```python
import torch

def _softmax(x, axis=-1):
    return torch.softmax(x, dim=axis)
def _gelu(x):
    return torch.nn.functional.gelu(x, approximate="tanh")
def _silu(x):
    return torch.nn.functional.silu(x)
def _sigmoid(x):
    return torch.sigmoid(x)
def _layernorm(x, axis=-1, eps=1e-5):
    m = x.mean(dim=axis, keepdim=True)
    v = x.var(dim=axis, keepdim=True, unbiased=False)
    return (x - m) / torch.sqrt(v + eps)
def _scatter_add(tgt, idx, src, axis=0):
    return tgt.clone().index_add_(axis, idx, src)
def _segment_sum(src, seg, n):
    out = torch.zeros((n,) + src.shape[1:], dtype=src.dtype)
    return out.index_add_(0, seg, src)
def _pad(x, pw):
    flat = tuple(v for pair in reversed(pw) for v in pair)
    return torch.nn.functional.pad(x, flat)

kernel_name = 'standalone__kv_cache_quant_int4_int2_kv_with_per_channel_or_per_token_scales__decode'

def setup_inputs():

    _w = (lambda a: (lambda t: t.to(torch.bfloat16) if t.is_floating_point() else t)(torch.as_tensor(a)))
    B = 1
    Sq = 1
    Skv = 65536
    Hq = 32
    Hkv = 16
    Dh = 128
    bits = 4
    G = -1
    if G <= 0 or G >= Skv:
        G = max(1, Skv // 2)
    Skv = (Skv // G) * G
    ngk = Skv // G
    qmax = (1 << bits) - 1
    return {
        "q": _w((lambda *s: torch.randn(*s, dtype=torch.bfloat16) * 1.6)(B, Hq, Sq, Dh)),
        "qk": _w(torch.randint(0, qmax + 1, (B, Hkv, Skv, Dh)).to(torch.int32)),
        "qv": _w(torch.randint(0, qmax + 1, (B, Hkv, Skv, Dh)).to(torch.int32)),
        "k_scales": _w(torch.abs((lambda *s: torch.randn(*s, dtype=torch.bfloat16) * 1.6)(B, Hkv, ngk, Dh)) * 0.05 + 0.02),
        "k_zeros": _w((lambda *s: torch.randn(*s, dtype=torch.bfloat16) * 1.6)(B, Hkv, ngk, Dh) + float(qmax) / 2.0),
        "v_scales": _w(torch.abs((lambda *s: torch.randn(*s, dtype=torch.bfloat16) * 0.05)(B, Hkv, Skv, 1)) * 0.05 + 0.02),
        "v_zeros": _w((lambda *s: torch.randn(*s, dtype=torch.bfloat16) * 0.05)(B, Hkv, Skv, 1) + float(qmax) / 2.0),
    }

def reference(q, qk, qv, k_scales, k_zeros, v_scales, v_zeros):
    B, Hq, Sq, Dh = q.shape
    Hkv, Skv = qk.shape[1], qk.shape[2]
    ngk = k_scales.shape[2]
    G = Skv // ngk
    ks = (lambda x, n, axis: torch.repeat_interleave(x, n, dim=axis))(k_scales, G, axis=2)
    kz = (lambda x, n, axis: torch.repeat_interleave(x, n, dim=axis))(k_zeros, G, axis=2)
    k = ((lambda x, dt: x.to(dt))(qk, q.dtype) - kz) * ks
    v = ((lambda x, dt: x.to(dt))(qv, q.dtype) - v_zeros) * v_scales
    rep = Hq // Hkv
    if rep > 1:
        k = (lambda x, n, axis: torch.repeat_interleave(x, n, dim=axis))(k, rep, axis=1)
        v = (lambda x, n, axis: torch.repeat_interleave(x, n, dim=axis))(v, rep, axis=1)
    scale = float(Dh) ** -0.5
    logits = torch.einsum("bhqd,bhkd->bhqk", q, k) * scale
    p = _softmax(logits, axis=-1)
    o = torch.einsum("bhqk,bhkd->bhqd", p, v)
    return o
```

```python
import sys

BASE = "standalone__kv_cache_quant_int4_int2_kv_with_per_channel_or_per_token_scales__decode"
HEADER = """; Kernarg layout for this problem (80 bytes, ptrs only, base s[0:1]):
"""

LOG2E = 0x3fb8aa3b
SCALE = 0x3db504f3


def gen(nwg=512, wpb=4, flags="nt", plo=False):
    L = []
    A = L.append
    totw = nwg * wpb
    wg_per_head = nwg // 16
    tok_per_wg = 65536 // wg_per_head
    ntiles = tok_per_wg // 32 // wpb
    part_per_head = totw // 16
    ML_OFF = totw * 1024
    WS_BYTES = ML_OFF + totw * 16
    main = "kvdec_main_kernel"
    comb = "kvdec_comb_kernel"
    A(HEADER.rstrip())
    A(f"; @launch kernel={main} grid=({nwg},1,1) block=({wpb*64},1,1) lds=0")
    A(f"; @launch kernel={comb} grid=(32,1,1) block=(256,1,1) lds=2048")
    A('.amdgcn_target "amdgcn-amd-amdhsa--gfx950"')
    A(".text")

    vK, vV, vS = 1, 2, 3
    QB = 4
    KZ = 8
    KS = 16
    SR = 24
    ZR = 28
    VZ = 32
    VS = 40
    T = 48
    U = 52
    AK = 60
    D = 64
    TT = 72
    BV = 60
    PA = 80
    ACC = 84
    MR, LS = 116, 117
    X0, X1, X2, X3, X4, X5 = 118, 119, 120, 121, 122, 123
    W0 = 124
    KB = 128
    VB = 192

    A(f".globl {main}")
    A(".p2align 8")
    A(f".type {main},@function")
    A(f"{main}:")
    A(f"  s_cmp_ge_u32 s2, {nwg}")
    A("  s_cbranch_scc1 L_main_end")
    A("  s_load_dwordx8 s[4:11], s[0:1], 0")
    A("  s_load_dwordx4 s[12:15], s[0:1], 32")
    A("  s_load_dwordx2 s[16:17], s[0:1], 48    ; vz")
    A("  s_load_dwordx2 s[18:19], s[0:1], 72    ; ws")
    A("  v_lshrrev_b32 v4, 6, v0")
    A("  v_and_b32 v0, 63, v0                    ; lane")
    A("  v_readfirstlane_b32 s3, v4")
    lg = wg_per_head.bit_length() - 1
    A(f"  s_lshr_b32 s20, s2, {lg}")
    A(f"  s_and_b32 s21, s2, {wg_per_head-1}")
    A(f"  s_lshr_b32 s22, s21, {lg-1}")
    A(f"  s_mul_i32 s23, s2, {tok_per_wg*512}")
    A(f"  s_mul_i32 s24, s2, {tok_per_wg*2}")
    A("  s_lshl_b32 s25, s3, 14                  ; wave * 16384")
    A("  s_lshl_b32 s26, s3, 6                   ; wave * 64")
    A("  v_lshrrev_b32 v4, 4, v0                 ; g")
    A("  v_bfe_u32 v5, v0, 2, 2                  ; a")
    A("  v_and_b32 v6, 3, v0                     ; r")
    A("  v_and_b32 v7, 15, v0                    ; n")
    A("  v_lshlrev_b32 v1, 12, v5")
    A("  v_lshl_add_u32 v1, v4, 6, v1")
    A("  v_lshl_add_u32 v1, v6, 4, v1")
    A("  v_add_u32 v1, s25, v1                   ; voffK")
    A("  v_lshlrev_b32 v2, 12, v4")
    A("  v_lshl_add_u32 v2, v7, 4, v2")
    A("  v_add_u32 v2, s25, v2                   ; voffV")
    A("  v_lshl_add_u32 v3, v4, 4, s26           ; voffS")
    A("  v_bfe_u32 v8, v0, 2, 1                  ; h")
    A("  v_lshlrev_b32 v9, 5, v4                 ; 32g")
    A("  v_lshl_add_u32 v9, v6, 3, v9            ; 32g + 8r")
    A("  s_lshl_b32 s27, s20, 9                  ; kvh*512")
    A("  v_lshl_add_u32 v10, v8, 8, v9")
    A("  v_add_u32 v10, s27, v10                 ; q offset")
    A("  s_lshl_b32 s28, s22, 8")
    A("  s_add_u32 s28, s28, s27")
    A("  v_add_u32 v11, s28, v9")
    A("  s_waitcnt lgkmcnt(0)")
    def srd(d, lo, hi, off, nrec):
        if off is None:
            A(f"  s_mov_b32 s{d}, s{lo}")
            A(f"  s_mov_b32 s{d+1}, s{hi}")
        else:
            A(f"  s_add_u32 s{d}, s{lo}, s{off}")
            A(f"  s_addc_u32 s{d+1}, s{hi}, 0")
        A(f"  s_mov_b32 s{d+2}, {nrec}")
        A(f"  s_mov_b32 s{d+3}, 0x00020000")
    srd(32, 4, 5, None, 8192)
    srd(36, 6, 7, 23, tok_per_wg * 512)
    srd(40, 8, 9, 23, tok_per_wg * 512)
    srd(44, 10, 11, None, 8192)
    srd(48, 12, 13, None, 8192)
    srd(52, 14, 15, 24, tok_per_wg * 2)
    srd(56, 16, 17, 24, tok_per_wg * 2)
    srd(60, 18, 19, None, WS_BYTES)
    sQ, sK, sV, sKS, sKZ, sVS, sVZ, sWS = ("s[32:35]", "s[36:39]", "s[40:43]", "s[44:47]", "s[48:51]", "s[52:55]", "s[56:59]", "s[60:63]")
    c0 = 48
    A(f"  buffer_load_dwordx2 v[{QB}:{QB+1}], v10, {sQ}, 0 offen")
    A(f"  buffer_load_dwordx2 v[{QB+2}:{QB+3}], v10, {sQ}, 0 offen offset:128")
    A(f"  buffer_load_dwordx2 v[{c0}:{c0+1}], v11, {sKZ}, 0 offen")
    A(f"  buffer_load_dwordx2 v[{c0+2}:{c0+3}], v11, {sKZ}, 0 offen offset:128")
    A(f"  buffer_load_dwordx2 v[{c0+4}:{c0+5}], v11, {sKS}, 0 offen")
    A(f"  buffer_load_dwordx2 v[{c0+6}:{c0+7}], v11, {sKS}, 0 offen offset:128")

    def kload(m, u):
        r = KB + (2 * m + u) * 4
        A(f"  buffer_load_dwordx4 v[{r}:{r+3}], v{vK}, {sK}, 0 offen offset:{m*512+u*256} {flags}")
    def vload(half, j):
        r = VB + (half * 8 + j) * 4
        A(f"  buffer_load_dwordx4 v[{r}:{r+3}], v{vV}, {sV}, 0 offen offset:{j*512+half*256} {flags}")
    def sload():
        A(f"  buffer_load_dwordx4 v[{SR}:{SR+3}], v{vS}, {sVS}, 0 offen")
        A(f"  buffer_load_dwordx4 v[{ZR}:{ZR+3}], v{vS}, {sVZ}, 0 offen")
    for m in range(8):
        kload(m, 0); kload(m, 1)
    sload()
    for half in range(2):
        for j in range(8):
            vload(half, j)
    for i in range(32):
        A(f"  v_mov_b32 v{ACC+i}, 0")
    A(f"  v_mov_b32 v{MR}, 0xff800000")
    A(f"  v_mov_b32 v{LS}, 0")
    A("  s_mov_b32 s64, 0xffff0000")
    A("  s_mov_b32 s65, 0xffff0000")
    A(f"  s_mov_b32 s66, 0x{LOG2E:08x}")
    A(f"  s_mov_b32 s67, 0x{SCALE:08x}")
    A("  s_mov_b32 s68, 0xffff0000")
    A(f"  s_mov_b32 s30, {ntiles}")
    A("  s_waitcnt vmcnt(34)")
    for i in range(4):
        A(f"  v_lshlrev_b32 v{KZ+2*i}, 16, v{c0+i}")
        A(f"  v_and_b32 v{KZ+2*i+1}, s68, v{c0+i}")
        A(f"  v_and_b32 v{KS+2*i}, 0xffff, v{c0+4+i}")
        A(f"  v_and_b32 v{KS+2*i+1}, s68, v{c0+4+i}")

    def dppsum(m):
        d = D + 4 * (m % 2)
        t = TT + m
        A(f"  v_mov_b32_dpp v{t}, v{d} quad_perm:[0,0,0,0] row_mask:0xf bank_mask:0xf")
        for j in range(1, 4):
            A(f"  v_add_f32_dpp v{t}, v{d+j}, v{t} quad_perm:[{j},{j},{j},{j}] row_mask:0xf bank_mask:0xf")

    A(".p2align 6")
    A("L_loop:")
    A(f"  v_add_u32 v{vK}, {16384*wpb}, v{vK}")
    A(f"  v_add_u32 v{vV}, {16384*wpb}, v{vV}")
    A(f"  v_add_u32 v{vS}, {64*wpb}, v{vS}")
    for m in range(8):
        x = KB + m * 8
        A("  s_waitcnt vmcnt(32)")
        for i in range(8):
            A(f"  v_cvt_f32_i32 v{x+i}, v{x+i}")
        for i in range(4):
            A(f"  v_pk_add_f32 v[{x+2*i}:{x+2*i+1}], v[{x+2*i}:{x+2*i+1}], v[{KZ+2*i}:{KZ+2*i+1}] neg_lo:[0,1] neg_hi:[0,1]")
        for i in range(4):
            A(f"  v_cvt_pk_bf16_f32 v{T+i}, v{x+2*i}, v{x+2*i+1}")
        kload(m, 0); kload(m, 1)
        if m > 0:
            dppsum(m - 1)
        for i in range(8):
            A(f"  v_dot2_f32_bf16 v{U+i}, v{T+i//2}, v{KS+i}, 0")
        for i in range(4):
            A(f"  v_cvt_pk_bf16_f32 v{AK+i}, v{U+2*i}, v{U+2*i+1}")
        A("  s_nop 1")
        d = D + 4 * (m % 2)
        A(f"  v_mfma_f32_16x16x32_bf16 v[{d}:{d+3}], v[{AK}:{AK+3}], v[{QB}:{QB+3}], 0")
    A("  s_waitcnt vmcnt(32)")
    for i in range(4):
        A(f"  v_lshlrev_b32 v{VZ+2*i}, 16, v{ZR+i}")
        A(f"  v_and_b32 v{VZ+2*i+1}, s68, v{ZR+i}")
        A(f"  v_and_b32 v{VS+2*i}, 0xffff, v{SR+i}")
        A(f"  v_and_b32 v{VS+2*i+1}, s68, v{SR+i}")
    sload()
    dppsum(7)
    for i in range(4):
        A(f"  v_cvt_pk_bf16_f32 v{T+i}, v{TT+2*i}, v{TT+2*i+1}")
    for i in range(4):
        A(f"  v_lshlrev_b32 v{TT+2*i}, 16, v{T+i}")
        A(f"  v_and_b32 v{TT+2*i+1}, s68, v{T+i}")
    for i in range(8):
        A(f"  v_mul_f32 v{TT+i}, s67, v{TT+i}")
    for i in range(4):
        A(f"  v_cvt_pk_bf16_f32 v{T+i}, v{TT+2*i}, v{TT+2*i+1}")
    for i in range(4):
        A(f"  v_lshlrev_b32 v{TT+2*i}, 16, v{T+i}")
        A(f"  v_and_b32 v{TT+2*i+1}, s68, v{T+i}")
    A(f"  v_max3_f32 v{X0}, v{TT}, v{TT+1}, v{TT+2}")
    A(f"  v_max3_f32 v{X1}, v{TT+3}, v{TT+4}, v{TT+5}")
    A(f"  v_max3_f32 v{X0}, v{TT+6}, v{TT+7}, v{X0}")
    A(f"  v_max_f32 v{X0}, v{X0}, v{X1}")
    A(f"  v_mov_b32 v{X1}, v{X0}")
    A("  s_nop 1")
    A(f"  v_permlane16_swap_b32 v{X0}, v{X1}")
    A(f"  v_max_f32 v{X0}, v{X0}, v{X1}")
    A(f"  v_mov_b32 v{X1}, v{X0}")
    A("  s_nop 1")
    A(f"  v_permlane32_swap_b32 v{X0}, v{X1}")
    A(f"  v_max_f32 v{X0}, v{X0}, v{X1}")
    A(f"  v_cmp_gt_f32 vcc, v{X0}, v{MR}")
    A("  s_cbranch_vccz L_norescale")
    A(f"  v_max_f32 v{X0}, v{X0}, v{MR}")
    A(f"  v_sub_f32 v{X1}, v{MR}, v{X0}")
    A(f"  v_mul_f32 v{X1}, s66, v{X1}")
    A(f"  v_exp_f32 v{X1}, v{X1}")
    A(f"  v_mov_b32 v{MR}, v{X0}")
    A("  s_nop 0")
    A(f"  v_mul_f32 v{LS}, v{LS}, v{X1}")
    A(f"  v_readlane_b32 s70, v{X1}, 0")
    A(f"  v_readlane_b32 s71, v{X1}, 4")
    A("  s_nop 1")
    A(f"  v_mov_b32 v{X2}, s70")
    A(f"  v_mov_b32 v{X3}, s71")
    A(f"  v_cndmask_b32 v{X2}, v{X2}, v{X3}, s[64:65]")
    for i in range(32):
        A(f"  v_mul_f32 v{ACC+i}, v{ACC+i}, v{X2}")
    A("L_norescale:")
    for i in range(8):
        A(f"  v_sub_f32 v{TT+i}, v{TT+i}, v{MR}")
    for i in range(8):
        A(f"  v_mul_f32 v{TT+i}, s66, v{TT+i}")
    for i in range(8):
        A(f"  v_exp_f32 v{TT+i}, v{TT+i}")
    A("  s_nop 0")
    for i in range(4):
        A(f"  v_cvt_pk_bf16_f32 v{PA+i}, v{TT+2*i}, v{TT+2*i+1}")
    A(f"  v_add_f32 v{X0}, v{TT}, v{TT+1}")
    A(f"  v_add_f32 v{X1}, v{TT+2}, v{TT+3}")
    A(f"  v_add_f32 v{X2}, v{TT+4}, v{TT+5}")
    A(f"  v_add_f32 v{X3}, v{TT+6}, v{TT+7}")
    A(f"  v_add_f32 v{X0}, v{X0}, v{X1}")
    A(f"  v_add_f32 v{X2}, v{X2}, v{X3}")
    A(f"  v_add_f32 v{X0}, v{X0}, v{X2}")
    A(f"  v_add_f32 v{LS}, v{LS}, v{X0}")
    for half in range(2):
        for jp in range(4):
            j = 2 * jp
            x = VB + (half * 8 + j) * 4
            y = x + 4
            A("  s_waitcnt vmcnt(32)")
            for i in range(8):
                A(f"  v_cvt_f32_i32 v{x+i}, v{x+i}")
            z = VZ + j
            for i in range(2):
                A(f"  v_pk_add_f32 v[{x+2*i}:{x+2*i+1}], v[{x+2*i}:{x+2*i+1}], v[{z}:{z+1}] op_sel_hi:[1,0] neg_lo:[0,1] neg_hi:[0,1]")
            for i in range(2):
                A(f"  v_pk_add_f32 v[{y+2*i}:{y+2*i+1}], v[{y+2*i}:{y+2*i+1}], v[{z}:{z+1}] op_sel:[0,1] op_sel_hi:[1,1] neg_lo:[0,1] neg_hi:[0,1]")
            for c in range(4):
                A(f"  v_cvt_pk_bf16_f32 v{T+c}, v{x+c}, v{y+c}")
            vload(half, j); vload(half, j + 1)
            for c in range(4):
                A(f"  v_dot2_f32_bf16 v{U+2*c}, v{T+c}, v{VS+j}, 0")
                A(f"  v_dot2_f32_bf16 v{U+2*c+1}, v{T+c}, v{VS+j+1}, 0")
            for c in range(4):
                A(f"  v_cvt_pk_bf16_f32 v{BV+4*c+jp}, v{U+2*c}, v{U+2*c+1}")
        A("  s_nop 1")
        for c in range(4):
            a = ACC + (half * 4 + c) * 4
            A(f"  v_mfma_f32_16x16x32_bf16 v[{a}:{a+3}], v[{PA}:{PA+3}], v[{BV+4*c}:{BV+4*c+3}], v[{a}:{a+3}]")
    A("  s_sub_u32 s30, s30, 1")
    A("  s_cmp_lg_u32 s30, 0")
    A("  s_cbranch_scc1 L_loop")
    A(f"  v_mov_b32 v{X1}, v{LS}")
    A("  s_nop 1")
    A(f"  v_permlane16_swap_b32 v{LS}, v{X1}")
    A(f"  v_add_f32 v{LS}, v{LS}, v{X1}")
    A(f"  v_mov_b32 v{X1}, v{LS}")
    A("  s_nop 1")
    A(f"  v_permlane32_swap_b32 v{LS}, v{X1}")
    A(f"  v_add_f32 v{LS}, v{LS}, v{X1}")
    A(f"  s_mul_i32 s31, s2, {wpb}")
    A("  s_add_u32 s31, s31, s3")
    A("  s_lshl_b32 s72, s31, 10                 ; W*1024")
    A("  s_lshl_b32 s73, s31, 4")
    A(f"  s_add_u32 s73, s73, {ML_OFF}")
    A(f"  v_bfe_u32 v{X0}, v0, 4, 1")
    A(f"  v_lshrrev_b32 v{X1}, 5, v0")
    A(f"  v_and_b32 v{X2}, 15, v0")
    A(f"  v_lshlrev_b32 v{X0}, 9, v{X0}")
    A(f"  v_lshl_add_u32 v{X0}, v{X1}, 8, v{X0}")
    A(f"  v_lshl_add_u32 v{X0}, v{X2}, 4, v{X0}")
    A(f"  v_add_u32 v{X0}, s72, v{X0}")
    A("  s_mov_b32 s74, 0")
    A("  s_mov_b32 s75, -1                       ; lanes 32..63")
    A("  s_nop 4")
    for c in range(4):
        A(f"  v_cndmask_b32 v{W0+c}, v{ACC+c*4}, v{ACC+16+c*4}, s[74:75]")
    A(f"  buffer_store_dwordx4 v[{W0}:{W0+3}], v{X0}, {sWS}, 0 offen")
    A(f"  v_lshlrev_b32 v{X3}, 1, v0")
    A(f"  v_add_u32 v{X3}, s73, v{X3}")
    A(f"  v_mov_b32 v{X4}, v{MR}")
    A(f"  v_mov_b32 v{X5}, v{LS}")
    A("  s_mov_b64 exec, 0x11")
    A(f"  buffer_store_dwordx2 v[{X4}:{X5}], v{X3}, {sWS}, 0 offen")
    A("L_main_end:")
    A("  s_endpgm")

    pph = part_per_head
    assert pph == 128
    A(f".globl {comb}")
    A(".p2align 8")
    A(f".type {comb},@function")
    A(f"{comb}:")
    A("  s_cmp_ge_u32 s2, 32")
    A("  s_cbranch_scc1 L_comb_end")
    A("  s_load_dwordx2 s[4:5], s[0:1], 56       ; out")
    A("  s_load_dwordx2 s[6:7], s[0:1], 72       ; ws")
    A("  v_lshrrev_b32 v4, 6, v0")
    A("  v_and_b32 v0, 63, v0")
    A("  v_readfirstlane_b32 s3, v4              ; wave")
    A("  s_lshr_b32 s20, s2, 1                   ; kvh")
    A("  s_and_b32 s21, s2, 1                    ; h")
    A(f"  s_mul_i32 s22, s20, {pph*16}")
    A("  s_lshl_b32 s23, s21, 3")
    A("  s_add_u32 s22, s22, s23")
    A(f"  s_add_u32 s22, s22, {ML_OFF}")
    A(f"  s_mul_i32 s24, s20, {pph*1024}")
    A("  s_lshl_b32 s25, s3, 15                  ; wave*32*1024")
    A("  s_add_u32 s24, s24, s25")
    A("  s_lshl_b32 s25, s21, 9")
    A("  s_add_u32 s24, s24, s25                 ; o base")
    A("  v_lshl_add_u32 v1, v0, 4, s22")
    A("  v_lshl_add_u32 v2, v0, 3, s24")
    for k in range(1, 8):
        A(f"  s_mov_b32 s{40+k}, {4096*k}")
    A("  s_waitcnt lgkmcnt(0)")
    A("  s_mov_b32 s8, s6"); A("  s_mov_b32 s9, s7"); A(f"  s_mov_b32 s10, {WS_BYTES}"); A("  s_mov_b32 s11, 0x00020000")
    A("  s_mov_b32 s12, s4"); A("  s_mov_b32 s13, s5"); A("  s_mov_b32 s14, 8192"); A("  s_mov_b32 s15, 0x00020000")
    A("  buffer_load_dwordx2 v[4:5], v1, s[8:11], 0 offen")
    A("  buffer_load_dwordx2 v[6:7], v1, s[8:11], 0 offen offset:1024")
    for i in range(32):
        so = f"s{40+i//4}" if i // 4 else "0"
        A(f"  buffer_load_dwordx2 v[{16+2*i}:{17+2*i}], v2, s[8:11], {so} offen offset:{(i%4)*1024}")
    A(f"  s_mov_b32 s66, 0x{LOG2E:08x}")
    A("  s_waitcnt vmcnt(32)")
    def allreduce(op, v, t):
        for dpp in ("quad_perm:[1,0,3,2]", "quad_perm:[2,3,0,1]", "row_half_mirror", "row_mirror"):
            A("  s_nop 1")
            A(f"  {op}_dpp v{v}, v{v}, v{v} {dpp} row_mask:0xf bank_mask:0xf")
        for sw in ("v_permlane16_swap_b32", "v_permlane32_swap_b32"):
            A(f"  v_mov_b32 v{t}, v{v}")
            A("  s_nop 1")
            A(f"  {sw} v{v}, v{t}")
            A(f"  {op} v{v}, v{v}, v{t}")
    A("  v_max_f32 v8, v4, v6")
    allreduce("v_max_f32", 8, 9)
    A("  v_sub_f32 v10, v4, v8")
    A("  v_sub_f32 v11, v6, v8")
    A("  v_mul_f32 v10, s66, v10")
    A("  v_mul_f32 v11, s66, v11")
    A("  v_exp_f32 v10, v10                      ; wA")
    A("  v_exp_f32 v11, v11                      ; wB")
    A("  s_nop 0")
    A("  v_mul_f32 v12, v10, v5")
    A("  v_fmac_f32 v12, v11, v7")
    allreduce("v_add_f32", 12, 9)
    A("  s_cmp_ge_u32 s3, 2")
    A("  s_cselect_b64 s[30:31], -1, 0")
    A("  s_and_b32 s32, s3, 1")
    A("  s_cmp_eq_u32 s32, 1")
    A("  s_cselect_b64 s[32:33], -1, 0")
    A("  v_cndmask_b32 v10, v10, v11, s[30:31]")
    A("  v_mov_b32 v11, v10")
    A("  s_nop 1")
    A("  v_permlane32_swap_b32 v10, v11")
    A("  v_cndmask_b32 v10, v10, v11, s[32:33]")
    A("  v_mov_b32 v14, 0")
    A("  v_mov_b32 v15, 0")
    A("  s_waitcnt vmcnt(0)")
    for b in range(4):
        for i in range(8):
            A(f"  v_readlane_b32 s{50+i}, v10, {b*8+i}")
        A("  s_nop 1")
        for i in range(8):
            k = b * 8 + i
            A(f"  v_fmac_f32 v14, s{50+i}, v{16+2*k}")
            A(f"  v_fmac_f32 v15, s{50+i}, v{17+2*k}")
    A("  s_lshl_b32 s25, s3, 9")
    A("  v_lshl_add_u32 v3, v0, 3, s25")
    A("  ds_write_b64 v3, v[14:15]")
    A("  s_waitcnt lgkmcnt(0)")
    A("  s_barrier")
    A("  s_cmp_lg_u32 s3, 0")
    A("  s_cbranch_scc1 L_comb_end")
    A("  v_lshlrev_b32 v3, 3, v0")
    A("  ds_read_b64 v[16:17], v3 offset:512")
    A("  ds_read_b64 v[18:19], v3 offset:1024")
    A("  ds_read_b64 v[20:21], v3 offset:1536")
    A("  v_rcp_f32 v13, v12")
    A("  s_waitcnt lgkmcnt(0)")
    A("  v_add_f32 v14, v14, v16")
    A("  v_add_f32 v15, v15, v17")
    A("  v_add_f32 v18, v18, v20")
    A("  v_add_f32 v19, v19, v21")
    A("  v_add_f32 v14, v14, v18")
    A("  v_add_f32 v15, v15, v19")
    A("  v_fma_f32 v9, -v12, v13, 1.0")
    A("  v_fma_f32 v13, v9, v13, v13")
    A("  v_mul_f32 v14, v14, v13")
    A("  v_mul_f32 v15, v15, v13")
    A("  v_cvt_pk_bf16_f32 v14, v14, v15")
    A("  s_lshl_b32 s25, s2, 8")
    A("  v_lshl_add_u32 v3, v0, 2, s25")
    A("  buffer_store_dword v14, v3, s[12:15], 0 offen")
    A("L_comb_end:")
    A("  s_endpgm")

    A('.section .rodata,"a"')
    for name, nv, ns in ((main, 256, 80), (comb, 80, 72)):
        A(".p2align 6")
        A(f".amdhsa_kernel {name}")
        A(f"  .amdhsa_next_free_vgpr {nv}")
        A(f"  .amdhsa_next_free_sgpr {ns}")
        A(f"  .amdhsa_accum_offset {nv}")
        A("  .amdhsa_group_segment_fixed_size 0")
        A("  .amdhsa_kernarg_size 80")
        A("  .amdhsa_user_sgpr_count 2")
        A("  .amdhsa_user_sgpr_kernarg_segment_ptr 1")
        A("  .amdhsa_system_sgpr_workgroup_id_x 1")
        A("  .amdhsa_float_denorm_mode_32 3")
        A(".end_amdhsa_kernel")
    return "\n".join(L) + "\n"


if __name__ == "__main__":
    out = sys.argv[1] if len(sys.argv) > 1 else f"cdna_kernels/{BASE}.s"
    open(out, "w").write(gen())
    print("wrote", out)
```

```python
import sys

BASE = "standalone__kv_cache_quant_int4_int2_kv_with_per_channel_or_per_token_scales__decode"
HEADER = """; Kernarg layout for this problem (80 bytes, ptrs only, base s[0:1]):
;   offset  40: d_in[5] v_scales  shape=(1, 16, 65536, 1) dtype=bfloat16
;   offset  48: d_in[6] v_zeros  shape=(1, 16, 65536, 1) dtype=bfloat16
"""

LOG2E = 0x3fb8aa3b
SCALE = 0x3db504f3


def gen(nwg=512, wpb=4, flags="nt", plo=False, vsub="ilv", strip="", mainonly=0, sflags=""):
    L = []
    A = L.append
    totw = nwg * wpb
    wg_per_head = nwg // 16
    tok_per_wg = 65536 // wg_per_head
    ntiles = tok_per_wg // 32 // wpb
    part_per_head = totw // 16
    ML_OFF = totw * 1024
    WS_BYTES = ML_OFF + totw * 16
    main = "kvdec_main_kernel"
    comb = "kvdec_comb_kernel"
    A(HEADER.rstrip())
    A(f"; @launch kernel={main} grid=({nwg},1,1) block=({wpb*64},1,1) lds=0")
    if not mainonly:
        A(f"; @launch kernel={comb} grid=(32,1,1) block=(256,1,1) lds=2048")
    A('.amdgcn_target "amdgcn-amd-amdhsa--gfx950"')
    A(".text")

    vK, vV, vS = 1, 2, 3
    QB = 4
    KZ = 8
    KS = 16
    SR = 24
    ZR = 28
    VZ = 32
    VS = 40
    T = 48
    U = 52
    AK = 60
    D = 64
    TT = 72
    BV = 60
    PA = 80
    ACC = 84
    MR, LS = 116, 117
    X0, X1, X2, X3, X4, X5 = 118, 119, 120, 121, 122, 123
    W0 = 124
    KB = 128
    VB = 192

    def vz(j):
        return VZ + 2 * j if vsub == "ilv" else VZ + j
    def vs(j):
        return VZ + 2 * j + 1 if vsub == "ilv" else VS + j

    A(f".globl {main}")
    A(".p2align 8")
    A(f".type {main},@function")
    A(f"{main}:")
    A(f"  s_cmp_ge_u32 s2, {nwg}")
    A("  s_cbranch_scc1 L_main_end")
    A("  s_load_dwordx8 s[4:11], s[0:1], 0")
    A("  s_load_dwordx4 s[12:15], s[0:1], 32")
    A("  s_load_dwordx2 s[16:17], s[0:1], 48    ; vz")
    A("  s_load_dwordx2 s[18:19], s[0:1], 72    ; ws")
    A("  v_lshrrev_b32 v4, 6, v0")
    A("  v_and_b32 v0, 63, v0                    ; lane")
    A("  v_readfirstlane_b32 s3, v4")
    lg = wg_per_head.bit_length() - 1
    A(f"  s_lshr_b32 s20, s2, {lg}")
    A(f"  s_and_b32 s21, s2, {wg_per_head-1}")
    A(f"  s_lshr_b32 s22, s21, {lg-1}")
    A(f"  s_mul_i32 s23, s2, {tok_per_wg*512}")
    A(f"  s_mul_i32 s24, s2, {tok_per_wg*2}        ; byte offset in v_scales / v_zeros")
    A("  s_lshl_b32 s25, s3, 14                  ; wave * 16384")
    A("  s_lshl_b32 s26, s3, 6                   ; wave * 64")
    A("  v_lshrrev_b32 v4, 4, v0                 ; g")
    A("  v_bfe_u32 v5, v0, 2, 2                  ; a")
    A("  v_and_b32 v6, 3, v0                     ; r")
    A("  v_and_b32 v7, 15, v0                    ; n")
    A("  v_lshlrev_b32 v1, 12, v5")
    A("  v_lshl_add_u32 v1, v4, 6, v1")
    A("  v_lshl_add_u32 v1, v6, 4, v1")
    A("  v_add_u32 v1, s25, v1                   ; voffK")
    A("  v_lshlrev_b32 v2, 12, v4")
    A("  v_lshl_add_u32 v2, v7, 4, v2")
    A("  v_add_u32 v2, s25, v2                   ; voffV")
    A("  v_lshl_add_u32 v3, v4, 4, s26           ; voffS")
    A("  v_bfe_u32 v8, v0, 2, 1                  ; h")
    A("  v_lshlrev_b32 v9, 5, v4                 ; 32g")
    A("  v_lshl_add_u32 v9, v6, 3, v9            ; 32g + 8r")
    A("  s_lshl_b32 s27, s20, 9                  ; kvh*512")
    A("  v_lshl_add_u32 v10, v8, 8, v9")
    A("  v_add_u32 v10, s27, v10                 ; q offset")
    A("  s_lshl_b32 s28, s22, 8")
    A("  s_add_u32 s28, s28, s27")
    A("  v_add_u32 v11, s28, v9")
    A("  s_waitcnt lgkmcnt(0)")
    def srd(d, lo, hi, off, nrec):
        if off is None:
            A(f"  s_mov_b32 s{d}, s{lo}")
            A(f"  s_mov_b32 s{d+1}, s{hi}")
        else:
            A(f"  s_add_u32 s{d}, s{lo}, s{off}")
            A(f"  s_addc_u32 s{d+1}, s{hi}, 0")
        A(f"  s_mov_b32 s{d+2}, {nrec}")
        A(f"  s_mov_b32 s{d+3}, 0x00020000")
    srd(32, 4, 5, None, 8192)
    srd(36, 6, 7, 23, tok_per_wg * 512)
    srd(40, 8, 9, 23, tok_per_wg * 512)
    srd(44, 10, 11, None, 8192)
    srd(48, 12, 13, None, 8192)
    srd(52, 14, 15, 24, tok_per_wg * 2)
    srd(56, 16, 17, 24, tok_per_wg * 2)
    srd(60, 18, 19, None, WS_BYTES)
    sQ, sK, sV, sKS, sKZ, sVS, sVZ, sWS = ("s[32:35]", "s[36:39]", "s[40:43]", "s[44:47]", "s[48:51]", "s[52:55]", "s[56:59]", "s[60:63]")
    c0 = 48
    A(f"  buffer_load_dwordx2 v[{QB}:{QB+1}], v10, {sQ}, 0 offen")
    A(f"  buffer_load_dwordx2 v[{QB+2}:{QB+3}], v10, {sQ}, 0 offen offset:128")
    A(f"  buffer_load_dwordx2 v[{c0}:{c0+1}], v11, {sKZ}, 0 offen")
    A(f"  buffer_load_dwordx2 v[{c0+2}:{c0+3}], v11, {sKZ}, 0 offen offset:128")
    A(f"  buffer_load_dwordx2 v[{c0+4}:{c0+5}], v11, {sKS}, 0 offen")
    A(f"  buffer_load_dwordx2 v[{c0+6}:{c0+7}], v11, {sKS}, 0 offen offset:128")

    def kload(m, u):
        r = KB + (2 * m + u) * 4
        A(f"  buffer_load_dwordx4 v[{r}:{r+3}], v{vK}, {sK}, 0 offen offset:{m*512+u*256} {flags}")
    def vload(half, j):
        r = VB + (half * 8 + j) * 4
        A(f"  buffer_load_dwordx4 v[{r}:{r+3}], v{vV}, {sV}, 0 offen offset:{j*512+half*256} {flags}")
    def sload():
        if sflags == "oob":
            A(f"  buffer_load_dwordx4 v[{SR}:{SR+3}], v{vS}, {sVS}, 0 offen offset:4095")
            A(f"  buffer_load_dwordx4 v[{ZR}:{ZR+3}], v{vS}, {sVZ}, 0 offen offset:4095")
            return
        A(f"  buffer_load_dwordx4 v[{SR}:{SR+3}], v{vS}, {sVS}, 0 offen {sflags}")
        A(f"  buffer_load_dwordx4 v[{ZR}:{ZR+3}], v{vS}, {sVZ}, 0 offen {sflags}")
    for m in range(8):
        kload(m, 0); kload(m, 1)
    sload()
    for half in range(2):
        for j in range(8):
            vload(half, j)
    for i in range(32):
        A(f"  v_mov_b32 v{ACC+i}, 0")
    A(f"  v_mov_b32 v{MR}, 0xff800000")
    A(f"  v_mov_b32 v{LS}, 0")
    A("  s_mov_b32 s64, 0xffff0000")
    A("  s_mov_b32 s65, 0xffff0000")
    A(f"  s_mov_b32 s66, 0x{LOG2E:08x}")
    A(f"  s_mov_b32 s67, 0x{SCALE:08x}")
    A("  s_mov_b32 s68, 0xffff0000")
    A(f"  s_mov_b32 s30, {ntiles-1}")
    A("  s_waitcnt vmcnt(34)")
    for i in range(4):
        A(f"  v_lshlrev_b32 v{KZ+2*i}, 16, v{c0+i}")
        A(f"  v_and_b32 v{KZ+2*i+1}, s68, v{c0+i}")
        A(f"  v_and_b32 v{KS+2*i}, 0xffff, v{c0+4+i}")
        A(f"  v_and_b32 v{KS+2*i+1}, s68, v{c0+4+i}")

    def dppsum_parts(m):
        d = D + 4 * (m % 2)
        t = TT + m
        g0 = [f"  v_mov_b32_dpp v{X4}, v{d} quad_perm:[0,0,0,0] row_mask:0xf bank_mask:0xf",
              f"  v_mov_b32_dpp v{X5}, v{d+2} quad_perm:[2,2,2,2] row_mask:0xf bank_mask:0xf"]
        g1 = [f"  v_add_f32_dpp v{X4}, v{d+1}, v{X4} quad_perm:[1,1,1,1] row_mask:0xf bank_mask:0xf",
              f"  v_add_f32_dpp v{X5}, v{d+3}, v{X5} quad_perm:[3,3,3,3] row_mask:0xf bank_mask:0xf"]
        g2 = [f"  v_add_f32 v{t}, v{X4}, v{X5}"]
        return g0, g1, g2

    def body(last):
        sfx = "_last" if last else ""
        phase = ["k"]
        def A(x):
            t = x.strip().split()[0] if x.strip() else ""
            if phase[0] in strip and t.startswith("v_") and not x.strip().startswith("v_add_u32"):
                return
            L.append(x)
        if not last:
            A(f"  v_add_u32 v{vK}, {16384*wpb}, v{vK}")
            A(f"  v_add_u32 v{vV}, {16384*wpb}, v{vV}")
            A(f"  v_add_u32 v{vS}, {64*wpb}, v{vS}")
        for m in range(8):
            x = KB + m * 8
            A(f"  s_waitcnt vmcnt({32-2*m if last else 32})")
            for i in range(8):
                A(f"  v_cvt_f32_i32 v{x+i}, v{x+i}")
            for i in range(4):
                A(f"  v_pk_add_f32 v[{x+2*i}:{x+2*i+1}], v[{x+2*i}:{x+2*i+1}], v[{KZ+2*i}:{KZ+2*i+1}] neg_lo:[0,1] neg_hi:[0,1]")
            for i in range(4):
                A(f"  v_cvt_pk_bf16_f32 v{T+i}, v{x+2*i}, v{x+2*i+1}")
            if not last:
                kload(m, 0); kload(m, 1)
            g0, g1, g2 = dppsum_parts(m - 1) if m > 0 else ([], [], [])
            for x_ in g0: A(x_)
            for i in range(8):
                A(f"  v_dot2_f32_bf16 v{U+i}, v{T+i//2}, v{KS+i}, 0")
                if i == 1:
                    for x_ in g1: A(x_)
                if i == 3:
                    for x_ in g2: A(x_)
            for i in range(4):
                A(f"  v_cvt_pk_bf16_f32 v{AK+i}, v{U+2*i}, v{U+2*i+1}")
            A("  s_nop 1")
            d = D + 4 * (m % 2)
            A(f"  v_mfma_f32_16x16x32_bf16 v[{d}:{d+3}], v[{AK}:{AK+3}], v[{QB}:{QB+3}], 0")
        phase[0] = "s"
        A(f"  s_waitcnt vmcnt({16 if last else 32})")
        for i in range(4):
            A(f"  v_lshlrev_b32 v{vz(2*i)}, 16, v{ZR+i}")
            A(f"  v_and_b32 v{vz(2*i+1)}, s68, v{ZR+i}")
            A(f"  v_and_b32 v{vs(2*i)}, 0xffff, v{SR+i}")
            A(f"  v_and_b32 v{vs(2*i+1)}, s68, v{SR+i}")
        g0, g1, g2 = dppsum_parts(7)
        for x_ in g0: A(x_)
        if last:
            A("  s_nop 1")
        else:
            sload()
        for x_ in g1: A(x_)
        for x_ in g2: A(x_)
        for i in range(4):
            A(f"  v_cvt_pk_bf16_f32 v{T+i}, v{TT+2*i}, v{TT+2*i+1}")
        for i in range(4):
            A(f"  v_lshlrev_b32 v{TT+2*i}, 16, v{T+i}")
            A(f"  v_and_b32 v{TT+2*i+1}, s68, v{T+i}")
        for i in range(8):
            A(f"  v_mul_f32 v{TT+i}, s67, v{TT+i}")
        for i in range(4):
            A(f"  v_cvt_pk_bf16_f32 v{T+i}, v{TT+2*i}, v{TT+2*i+1}")
        for i in range(4):
            A(f"  v_lshlrev_b32 v{TT+2*i}, 16, v{T+i}")
            A(f"  v_and_b32 v{TT+2*i+1}, s68, v{T+i}")
        A(f"  v_max3_f32 v{X0}, v{TT}, v{TT+1}, v{TT+2}")
        A(f"  v_max3_f32 v{X1}, v{TT+3}, v{TT+4}, v{TT+5}")
        A(f"  v_max3_f32 v{X0}, v{TT+6}, v{TT+7}, v{X0}")
        A(f"  v_max_f32 v{X0}, v{X0}, v{X1}")
        A(f"  v_mov_b32 v{X1}, v{X0}")
        A("  s_nop 1")
        A(f"  v_permlane16_swap_b32 v{X0}, v{X1}")
        A(f"  v_max_f32 v{X0}, v{X0}, v{X1}")
        A(f"  v_mov_b32 v{X1}, v{X0}")
        A("  s_nop 1")
        A(f"  v_permlane32_swap_b32 v{X0}, v{X1}")
        A(f"  v_max_f32 v{X0}, v{X0}, v{X1}")
        A(f"  v_cmp_gt_f32 vcc, v{X0}, v{MR}")
        A(f"  s_cbranch_vccz L_norescale{sfx}")
        A(f"  v_max_f32 v{X0}, v{X0}, v{MR}")
        A(f"  v_sub_f32 v{X1}, v{MR}, v{X0}")
        A(f"  v_mul_f32 v{X1}, s66, v{X1}")
        A(f"  v_exp_f32 v{X1}, v{X1}")
        A(f"  v_mov_b32 v{MR}, v{X0}")
        A("  s_nop 0")
        A(f"  v_mul_f32 v{LS}, v{LS}, v{X1}")
        A(f"  v_readlane_b32 s70, v{X1}, 0")
        A(f"  v_readlane_b32 s71, v{X1}, 4")
        A("  s_nop 1")
        A(f"  v_mov_b32 v{X2}, s70")
        A(f"  v_mov_b32 v{X3}, s71")
        A(f"  v_cndmask_b32 v{X2}, v{X2}, v{X3}, s[64:65]")
        for i in range(32):
            A(f"  v_mul_f32 v{ACC+i}, v{ACC+i}, v{X2}")
        A(f"L_norescale{sfx}:")
        for i in range(8):
            A(f"  v_sub_f32 v{TT+i}, v{TT+i}, v{MR}")
        for i in range(8):
            A(f"  v_mul_f32 v{TT+i}, s66, v{TT+i}")
        for i in range(8):
            A(f"  v_exp_f32 v{TT+i}, v{TT+i}")
        A("  s_nop 0")
        for i in range(4):
            A(f"  v_cvt_pk_bf16_f32 v{PA+i}, v{TT+2*i}, v{TT+2*i+1}")
        A(f"  v_add_f32 v{X0}, v{TT}, v{TT+1}")
        A(f"  v_add_f32 v{X1}, v{TT+2}, v{TT+3}")
        A(f"  v_add_f32 v{X2}, v{TT+4}, v{TT+5}")
        A(f"  v_add_f32 v{X3}, v{TT+6}, v{TT+7}")
        A(f"  v_add_f32 v{X0}, v{X0}, v{X1}")
        A(f"  v_add_f32 v{X2}, v{X2}, v{X3}")
        A(f"  v_add_f32 v{X0}, v{X0}, v{X2}")
        A(f"  v_add_f32 v{LS}, v{LS}, v{X0}")
        phase[0] = "v"
        for half in range(2):
            for jp in range(4):
                j = 2 * jp
                x = VB + (half * 8 + j) * 4
                y = x + 4
                A(f"  s_waitcnt vmcnt({14-2*(half*4+jp) if last else 32})")
                for i in range(8):
                    A(f"  v_cvt_f32_i32 v{x+i}, v{x+i}")
                if vsub == "ilv":
                    for (b, z) in ((x, vz(j)), (y, vz(j + 1))):
                        for i in range(2):
                            A(f"  v_pk_add_f32 v[{b+2*i}:{b+2*i+1}], v[{b+2*i}:{b+2*i+1}], v[{z}:{z+1}] op_sel_hi:[1,0] neg_lo:[0,1] neg_hi:[0,1]")
                elif vsub == "scalar":
                    for (b, z) in ((x, vz(j)), (y, vz(j + 1))):
                        for i in range(4):
                            A(f"  v_sub_f32 v{b+i}, v{b+i}, v{z}")
                else:
                    z = VZ + j
                    for i in range(2):
                        A(f"  v_pk_add_f32 v[{x+2*i}:{x+2*i+1}], v[{x+2*i}:{x+2*i+1}], v[{z}:{z+1}] op_sel_hi:[1,0] neg_lo:[0,1] neg_hi:[0,1]")
                    for i in range(2):
                        A(f"  v_pk_add_f32 v[{y+2*i}:{y+2*i+1}], v[{y+2*i}:{y+2*i+1}], v[{z}:{z+1}] op_sel:[0,1] op_sel_hi:[1,1] neg_lo:[0,1] neg_hi:[0,1]")
                for c in range(4):
                    A(f"  v_cvt_pk_bf16_f32 v{T+c}, v{x+c}, v{y+c}")
                if not last:
                    vload(half, j); vload(half, j + 1)
                for c in range(4):
                    A(f"  v_dot2_f32_bf16 v{U+2*c}, v{T+c}, v{vs(j)}, 0")
                    A(f"  v_dot2_f32_bf16 v{U+2*c+1}, v{T+c}, v{vs(j+1)}, 0")
                for c in range(4):
                    A(f"  v_cvt_pk_bf16_f32 v{BV+4*c+jp}, v{U+2*c}, v{U+2*c+1}")
            A("  s_nop 1")
            for c in range(4):
                a = ACC + (half * 4 + c) * 4
                A(f"  v_mfma_f32_16x16x32_bf16 v[{a}:{a+3}], v[{PA}:{PA+3}], v[{BV+4*c}:{BV+4*c+3}], v[{a}:{a+3}]")

    A(".p2align 6")
    A("L_loop:")
    body(False)
    A("  s_sub_u32 s30, s30, 1")
    A("  s_cmp_lg_u32 s30, 0")
    A("  s_cbranch_scc1 L_loop")
    body(True)
    A(f"  v_mov_b32 v{X1}, v{LS}")
    A("  s_nop 1")
    A(f"  v_permlane16_swap_b32 v{LS}, v{X1}")
    A(f"  v_add_f32 v{LS}, v{LS}, v{X1}")
    A(f"  v_mov_b32 v{X1}, v{LS}")
    A("  s_nop 1")
    A(f"  v_permlane32_swap_b32 v{LS}, v{X1}")
    A(f"  v_add_f32 v{LS}, v{LS}, v{X1}")
    A(f"  s_mul_i32 s31, s2, {wpb}")
    A("  s_add_u32 s31, s31, s3")
    A("  s_lshl_b32 s72, s31, 10                 ; W*1024")
    A("  s_lshl_b32 s73, s31, 4")
    A(f"  s_add_u32 s73, s73, {ML_OFF}")
    A(f"  v_bfe_u32 v{X0}, v0, 4, 1")
    A(f"  v_lshrrev_b32 v{X1}, 5, v0")
    A(f"  v_and_b32 v{X2}, 15, v0")
    A(f"  v_lshlrev_b32 v{X0}, 9, v{X0}")
    A(f"  v_lshl_add_u32 v{X0}, v{X1}, 8, v{X0}")
    A(f"  v_lshl_add_u32 v{X0}, v{X2}, 4, v{X0}")
    A(f"  v_add_u32 v{X0}, s72, v{X0}")
    A("  s_mov_b32 s74, 0")
    A("  s_mov_b32 s75, -1                       ; lanes 32..63")
    A("  s_nop 4")
    for c in range(4):
        A(f"  v_cndmask_b32 v{W0+c}, v{ACC+c*4}, v{ACC+16+c*4}, s[74:75]")
    A(f"  buffer_store_dwordx4 v[{W0}:{W0+3}], v{X0}, {sWS}, 0 offen")
    A(f"  v_lshlrev_b32 v{X3}, 1, v0")
    A(f"  v_add_u32 v{X3}, s73, v{X3}")
    A(f"  v_mov_b32 v{X4}, v{MR}")
    A(f"  v_mov_b32 v{X5}, v{LS}")
    A("  s_mov_b64 exec, 0x11")
    A(f"  buffer_store_dwordx2 v[{X4}:{X5}], v{X3}, {sWS}, 0 offen")
    A("L_main_end:")
    A("  s_endpgm")

    pph = part_per_head
    assert pph == 128
    A(f".globl {comb}")
    A(".p2align 8")
    A(f".type {comb},@function")
    A(f"{comb}:")
    A("  s_cmp_ge_u32 s2, 32")
    A("  s_cbranch_scc1 L_comb_end")
    A("  s_load_dwordx2 s[4:5], s[0:1], 56       ; out")
    A("  s_load_dwordx2 s[6:7], s[0:1], 72       ; ws")
    A("  v_lshrrev_b32 v4, 6, v0")
    A("  v_and_b32 v0, 63, v0")
    A("  v_readfirstlane_b32 s3, v4              ; wave")
    A("  s_lshr_b32 s20, s2, 1                   ; kvh")
    A("  s_and_b32 s21, s2, 1                    ; h")
    A(f"  s_mul_i32 s22, s20, {pph*16}")
    A("  s_lshl_b32 s23, s21, 3")
    A("  s_add_u32 s22, s22, s23")
    A(f"  s_add_u32 s22, s22, {ML_OFF}")
    A(f"  s_mul_i32 s24, s20, {pph*1024}")
    A("  s_lshl_b32 s25, s3, 15                  ; wave*32*1024")
    A("  s_add_u32 s24, s24, s25")
    A("  s_lshl_b32 s25, s21, 9")
    A("  s_add_u32 s24, s24, s25                 ; o base")
    A("  v_lshl_add_u32 v1, v0, 4, s22")
    A("  v_lshl_add_u32 v2, v0, 3, s24")
    for k in range(1, 8):
        A(f"  s_mov_b32 s{40+k}, {4096*k}")
    A("  s_waitcnt lgkmcnt(0)")
    A("  s_mov_b32 s8, s6"); A("  s_mov_b32 s9, s7"); A(f"  s_mov_b32 s10, {WS_BYTES}"); A("  s_mov_b32 s11, 0x00020000")
    A("  s_mov_b32 s12, s4"); A("  s_mov_b32 s13, s5"); A("  s_mov_b32 s14, 8192"); A("  s_mov_b32 s15, 0x00020000")
    A("  buffer_load_dwordx2 v[4:5], v1, s[8:11], 0 offen")
    A("  buffer_load_dwordx2 v[6:7], v1, s[8:11], 0 offen offset:1024")
    for i in range(32):
        so = f"s{40+i//4}" if i // 4 else "0"
        A(f"  buffer_load_dwordx2 v[{16+2*i}:{17+2*i}], v2, s[8:11], {so} offen offset:{(i%4)*1024}")
    A(f"  s_mov_b32 s66, 0x{LOG2E:08x}")
    A("  s_waitcnt vmcnt(32)")
    def allreduce(op, v, t):
        for dpp in ("quad_perm:[1,0,3,2]", "quad_perm:[2,3,0,1]", "row_half_mirror", "row_mirror"):
            A("  s_nop 1")
            A(f"  {op}_dpp v{v}, v{v}, v{v} {dpp} row_mask:0xf bank_mask:0xf")
        for sw in ("v_permlane16_swap_b32", "v_permlane32_swap_b32"):
            A(f"  v_mov_b32 v{t}, v{v}")
            A("  s_nop 1")
            A(f"  {sw} v{v}, v{t}")
            A(f"  {op} v{v}, v{v}, v{t}")
    A("  v_max_f32 v8, v4, v6")
    allreduce("v_max_f32", 8, 9)
    A("  v_sub_f32 v10, v4, v8")
    A("  v_sub_f32 v11, v6, v8")
    A("  v_mul_f32 v10, s66, v10")
    A("  v_mul_f32 v11, s66, v11")
    A("  v_exp_f32 v10, v10                      ; wA")
    A("  v_exp_f32 v11, v11                      ; wB")
    A("  s_nop 0")
    A("  v_mul_f32 v12, v10, v5")
    A("  v_fmac_f32 v12, v11, v7")
    allreduce("v_add_f32", 12, 9)
    A("  s_cmp_ge_u32 s3, 2")
    A("  s_cselect_b64 s[30:31], -1, 0")
    A("  s_and_b32 s32, s3, 1")
    A("  s_cmp_eq_u32 s32, 1")
    A("  s_cselect_b64 s[32:33], -1, 0")
    A("  v_cndmask_b32 v10, v10, v11, s[30:31]")
    A("  v_mov_b32 v11, v10")
    A("  s_nop 1")
    A("  v_permlane32_swap_b32 v10, v11")
    A("  v_cndmask_b32 v10, v10, v11, s[32:33]")
    A("  v_mov_b32 v14, 0")
    A("  v_mov_b32 v15, 0")
    A("  s_waitcnt vmcnt(0)")
    for b in range(4):
        for i in range(8):
            A(f"  v_readlane_b32 s{50+i}, v10, {b*8+i}")
        A("  s_nop 1")
        for i in range(8):
            k = b * 8 + i
            A(f"  v_fmac_f32 v14, s{50+i}, v{16+2*k}")
            A(f"  v_fmac_f32 v15, s{50+i}, v{17+2*k}")
    A("  s_lshl_b32 s25, s3, 9")
    A("  v_lshl_add_u32 v3, v0, 3, s25")
    A("  ds_write_b64 v3, v[14:15]")
    A("  s_waitcnt lgkmcnt(0)")
    A("  s_barrier")
    A("  s_cmp_lg_u32 s3, 0")
    A("  s_cbranch_scc1 L_comb_end")
    A("  v_lshlrev_b32 v3, 3, v0")
    A("  ds_read_b64 v[16:17], v3 offset:512")
    A("  ds_read_b64 v[18:19], v3 offset:1024")
    A("  ds_read_b64 v[20:21], v3 offset:1536")
    A("  v_rcp_f32 v13, v12")
    A("  s_waitcnt lgkmcnt(0)")
    A("  v_add_f32 v14, v14, v16")
    A("  v_add_f32 v15, v15, v17")
    A("  v_add_f32 v18, v18, v20")
    A("  v_add_f32 v19, v19, v21")
    A("  v_add_f32 v14, v14, v18")
    A("  v_add_f32 v15, v15, v19")
    A("  v_fma_f32 v9, -v12, v13, 1.0")
    A("  v_fma_f32 v13, v9, v13, v13")
    A("  v_mul_f32 v14, v14, v13")
    A("  v_mul_f32 v15, v15, v13")
    A("  v_cvt_pk_bf16_f32 v14, v14, v15")
    A("  s_lshl_b32 s25, s2, 8")
    A("  v_lshl_add_u32 v3, v0, 2, s25")
    A("  buffer_store_dword v14, v3, s[12:15], 0 offen")
    A("L_comb_end:")
    A("  s_endpgm")

    A('.section .rodata,"a"')
    for name, nv, ns in ((main, 256, 80), (comb, 80, 72)):
        A(".p2align 6")
        A(f".amdhsa_kernel {name}")
        A(f"  .amdhsa_next_free_vgpr {nv}")
        A(f"  .amdhsa_next_free_sgpr {ns}")
        A(f"  .amdhsa_accum_offset {nv}")
        A("  .amdhsa_group_segment_fixed_size 0")
        A("  .amdhsa_kernarg_size 80")
        A("  .amdhsa_user_sgpr_count 2")
        A("  .amdhsa_user_sgpr_kernarg_segment_ptr 1")
        A("  .amdhsa_system_sgpr_workgroup_id_x 1")
        A("  .amdhsa_float_denorm_mode_32 3")
        A(".end_amdhsa_kernel")
    return "\n".join(L) + "\n"


if __name__ == "__main__":
    out = sys.argv[1] if len(sys.argv) > 1 else f"cdna_kernels/{BASE}.s"
    kw = {}
    for a in sys.argv[2:]:
        k, v = a.split("=")
        kw[k] = int(v) if v.lstrip("-").isdigit() else v
    open(out, "w").write(gen(**kw))
    print("wrote", out, kw)
```

```python
import sys

BASE = "standalone__kv_cache_quant_int4_int2_kv_with_per_channel_or_per_token_scales__decode"
HEADER = """; Kernarg layout for this problem (80 bytes, ptrs only, base s[0:1]):
"""

LOG2E = 0x3fb8aa3b
SCALE = 0x3db504f3


def gen(G=4, P=12, flags="nt", sflags="nt", mainonly=0, dyn=1, ts=0):
    L = []
    A = L.append
    nwg, wpb = 256, 8
    totw = nwg * wpb
    part_per_head = totw // 16
    ML_OFF = totw * 1024
    CNT_OFF = 4 << 20
    TS_OFF = 5 << 20
    WS_BYTES = 6 << 20
    lgG = G.bit_length() - 1
    NU = 16 * G
    if not dyn:
        P = 16
    LDS_SLOT = 32768
    main = "kvdec_main_kernel"
    comb = "kvdec_comb_kernel"
    A(HEADER.rstrip())
    A(f"; @launch kernel={main} grid=({nwg},1,1) block=({wpb*64},1,1) lds={LDS_SLOT+64}")
    if not mainonly:
        A(f"; @launch kernel={comb} grid=(32,1,1) block=(256,1,1) lds=2048")
    A('.amdgcn_target "amdgcn-amd-amdhsa--gfx950"')
    A(".text")

    vK, vV, vS = 1, 2, 3
    QB = 4
    KZ = 8
    KS = 16
    SR = 24
    ZR = 28
    VZ = 32
    T = 48
    U = 52
    AK = 60
    D = 64
    TT = 72
    BV = 60
    PA = 80
    ACC = 84
    MR, LS = 116, 117
    X0, X1, X2, X3, X4, X5 = 118, 119, 120, 121, 122, 123
    W0 = 124
    vAT, vCN, vFL, vLD = 124, 125, 126, 127
    KB = 128
    VB = 192

    def vz(j):
        return VZ + 2 * j
    def vs(j):
        return VZ + 2 * j + 1

    A(f".globl {main}")
    A(".p2align 8")
    A(f".type {main},@function")
    A(f"{main}:")
    A(f"  s_cmp_ge_u32 s2, {nwg}")
    A("  s_cbranch_scc1 L_main_end")
    if ts:
        A("  s_memrealtime s[84:85]")
    A("  s_load_dwordx8 s[4:11], s[0:1], 0")
    A("  s_load_dwordx4 s[12:15], s[0:1], 32")
    A("  s_load_dwordx2 s[16:17], s[0:1], 48    ; vz")
    A("  s_load_dwordx4 s[20:23], s[0:1], 64")
    A("  v_lshrrev_b32 v4, 6, v0")
    A("  v_and_b32 v0, 63, v0                    ; lane")
    A("  v_readfirstlane_b32 s3, v4")
    A(f"  s_lshr_b32 s24, s2, {lgG}                ; group")
    A(f"  s_and_b32 s25, s2, {G-1}                 ; member")
    A("  s_and_b32 s26, s24, 1                   ; set")
    A("  s_lshl_b32 s26, s26, 3")
    A("  s_add_u32 s26, s26, s3")
    A("  s_lshr_b32 s27, s24, 1")
    A(f"  s_lshl_b32 s27, s27, {lgG}")
    A("  s_lshl_b32 s18, s26, 25")
    A("  s_lshl_b32 s19, s26, 17")
    A("  v_lshrrev_b32 v4, 4, v0                 ; g")
    A("  v_bfe_u32 v5, v0, 2, 2                  ; a")
    A("  v_and_b32 v6, 3, v0                     ; r")
    A("  v_and_b32 v7, 15, v0                    ; n")
    A("  v_lshlrev_b32 v1, 12, v5")
    A("  v_lshl_add_u32 v1, v4, 6, v1")
    A("  v_lshl_add_u32 v1, v6, 4, v1            ; voffK")
    A("  v_lshlrev_b32 v2, 12, v4")
    A("  v_lshl_add_u32 v2, v7, 4, v2            ; voffV")
    A("  v_lshlrev_b32 v3, 4, v4                 ; voffS")
    A("  v_bfe_u32 v8, v0, 2, 1                  ; h")
    A("  v_lshlrev_b32 v9, 5, v4                 ; 32g")
    A("  v_lshl_add_u32 v9, v6, 3, v9            ; 32g + 8r")
    A("  s_lshl_b32 s28, s26, 9                  ; kvh*512")
    A("  v_lshl_add_u32 v10, v8, 8, v9")
    A("  v_add_u32 v10, s28, v10                 ; q offset")
    A("  v_add_u32 v11, s28, v9")
    A("  s_lshl_b32 s28, s3, 12")
    A(f"  v_lshl_add_u32 v{vLD}, v0, 4, s28")
    A("  s_lshl_b32 s28, s24, 8")
    A(f"  s_add_u32 s28, s28, {CNT_OFF}")
    A(f"  v_mov_b32 v{vCN}, s28")
    A("  s_lshl_b32 s28, s24, 2")
    A(f"  v_mov_b32 v{vFL}, s28")
    A(f"  v_mov_b32 v{vAT}, 0")
    A("  s_waitcnt lgkmcnt(0)")
    def srd(d, lo, hi, off, nrec):
        if off is None:
            A(f"  s_mov_b32 s{d}, s{lo}")
            A(f"  s_mov_b32 s{d+1}, s{hi}")
        else:
            A(f"  s_add_u32 s{d}, s{lo}, s{off}")
            A(f"  s_addc_u32 s{d+1}, s{hi}, 0")
        A(f"  s_mov_b32 s{d+2}, {nrec}")
        A(f"  s_mov_b32 s{d+3}, 0x00020000")
    srd(32, 4, 5, None, 8192)
    srd(36, 6, 7, 18, 1 << 25)
    srd(40, 8, 9, 18, 1 << 25)
    srd(44, 10, 11, None, 8192)
    srd(48, 12, 13, None, 8192)
    srd(52, 14, 15, 19, 1 << 17)
    srd(56, 16, 17, 19, 1 << 17)
    srd(60, 22, 23, None, WS_BYTES)
    srd(76, 20, 21, None, 256)
    sQ, sK, sV, sKS, sKZ, sVS, sVZ, sWS, sDB = ("s[32:35]", "s[36:39]", "s[40:43]", "s[44:47]", "s[48:51]", "s[52:55]", "s[56:59]", "s[60:63]", "s[76:79]")
    A("  s_cmp_eq_u32 s25, 0")
    A("  s_cselect_b32 s74, 1, 0")
    A("  s_cmp_eq_u32 s3, 0")
    A("  s_cselect_b32 s80, 1, 0")
    A("  s_and_b32 s81, s74, s80")
    if dyn:
        A("  s_cmp_eq_u32 s81, 0")
        A("  s_cbranch_scc1 L_noinit")
        A("  s_mov_b64 exec, 1")
        A(f"  buffer_store_dword v{vAT}, v{vCN}, {sWS}, 0 offen sc1   ; counter = 0")
        A("  s_mov_b64 exec, -1")
        A("L_noinit:")

    def setitem(su):
        A(f"  s_lshr_b32 s72, s{su}, {lgG}")
        A("  s_add_u32 s72, s72, s26")
        A("  s_and_b32 s72, s72, 15")
        A("  s_lshr_b32 s75, s72, 3")
        A("  s_lshl_b32 s72, s72, 7")
        A(f"  s_and_b32 s73, s{su}, {G-1}")
        A("  s_add_u32 s72, s72, s73")
        A("  s_add_u32 s72, s72, s27                 ; tile")
        A("  s_lshl_b32 s73, s72, 6")
        A("  s_lshl_b32 s72, s72, 14")

    c0 = 48
    A(f"  buffer_load_dwordx2 v[{QB}:{QB+1}], v10, {sQ}, 0 offen")
    A(f"  buffer_load_dwordx2 v[{QB+2}:{QB+3}], v10, {sQ}, 0 offen offset:128")
    for g in range(2):
        c = c0 + 8 * g
        A(f"  buffer_load_dwordx2 v[{c}:{c+1}], v11, {sKZ}, 0 offen offset:{256*g}")
        A(f"  buffer_load_dwordx2 v[{c+2}:{c+3}], v11, {sKZ}, 0 offen offset:{256*g+128}")
        A(f"  buffer_load_dwordx2 v[{c+4}:{c+5}], v11, {sKS}, 0 offen offset:{256*g}")
        A(f"  buffer_load_dwordx2 v[{c+6}:{c+7}], v11, {sKS}, 0 offen offset:{256*g+128}")
    setitem(25)

    def kload(m, u):
        r = KB + (2 * m + u) * 4
        A(f"  buffer_load_dwordx4 v[{r}:{r+3}], v{vK}, {sK}, s72 offen offset:{m*512+u*256} {flags}")
    def vload(half, j):
        r = VB + (half * 8 + j) * 4
        A(f"  buffer_load_dwordx4 v[{r}:{r+3}], v{vV}, {sV}, s72 offen offset:{j*512+half*256} {flags}")
    def sload():
        A(f"  buffer_load_dwordx4 v[{SR}:{SR+3}], v{vS}, {sVS}, s73 offen {sflags}")
        A(f"  buffer_load_dwordx4 v[{ZR}:{ZR+3}], v{vS}, {sVZ}, s73 offen {sflags}")
    for m in range(8):
        kload(m, 0); kload(m, 1)
    sload()
    for half in range(2):
        for j in range(8):
            vload(half, j)
    for i in range(32):
        A(f"  v_mov_b32 v{ACC+i}, 0")
    A(f"  v_mov_b32 v{MR}, 0xff800000")
    A(f"  v_mov_b32 v{LS}, 0")
    A("  s_mov_b32 s64, 0xffff0000")
    A("  s_mov_b32 s65, 0xffff0000")
    A(f"  s_mov_b32 s66, 0x{LOG2E:08x}")
    A(f"  s_mov_b32 s67, 0x{SCALE:08x}")
    A("  s_mov_b32 s68, 0xffff0000")
    A(f"  s_add_u32 s28, s25, {G}")
    A("  s_mov_b32 s29, 2")
    A(f"  s_mov_b32 s31, {LDS_SLOT}")
    A("  s_mov_b32 s82, 0")
    A("  s_waitcnt vmcnt(34)")
    for i in range(4):
        A(f"  ds_write_b128 v{vLD}, v[{c0+4*i}:{c0+4*i+3}] offset:{1024*i}")
    A("  s_waitcnt lgkmcnt(0)")

    def kconst():
        A("  s_mov_b32 s30, s75")
        A("  s_lshl_b32 s70, s75, 11")
        A(f"  v_add_u32 v{X0}, s70, v{vLD}")
        A(f"  ds_read_b128 v[{c0}:{c0+3}], v{X0}")
        A(f"  ds_read_b128 v[{c0+4}:{c0+7}], v{X0} offset:1024")
        A("  s_waitcnt lgkmcnt(0)")
        for i in range(4):
            A(f"  v_lshlrev_b32 v{KZ+2*i}, 16, v{c0+i}")
            A(f"  v_and_b32 v{KZ+2*i+1}, s68, v{c0+i}")
            A(f"  v_and_b32 v{KS+2*i}, 0xffff, v{c0+4+i}")
            A(f"  v_and_b32 v{KS+2*i+1}, s68, v{c0+4+i}")
    kconst()

    def dppsum_parts(m):
        d = D + 4 * (m % 2)
        t = TT + m
        g0 = [f"  v_mov_b32_dpp v{X4}, v{d} quad_perm:[0,0,0,0] row_mask:0xf bank_mask:0xf",
              f"  v_mov_b32_dpp v{X5}, v{d+2} quad_perm:[2,2,2,2] row_mask:0xf bank_mask:0xf"]
        g1 = [f"  v_add_f32_dpp v{X4}, v{d+1}, v{X4} quad_perm:[1,1,1,1] row_mask:0xf bank_mask:0xf",
              f"  v_add_f32_dpp v{X5}, v{d+3}, v{X5} quad_perm:[3,3,3,3] row_mask:0xf bank_mask:0xf"]
        g2 = [f"  v_add_f32 v{t}, v{X4}, v{X5}"]
        return g0, g1, g2

    def body(last):
        sfx = "_last" if last else ""
        for m in range(8):
            x = KB + m * 8
            A(f"  s_waitcnt vmcnt({32-2*m if last else 32})")
            for i in range(8):
                A(f"  v_cvt_f32_i32 v{x+i}, v{x+i}")
            for i in range(4):
                A(f"  v_pk_add_f32 v[{x+2*i}:{x+2*i+1}], v[{x+2*i}:{x+2*i+1}], v[{KZ+2*i}:{KZ+2*i+1}] neg_lo:[0,1] neg_hi:[0,1]")
            for i in range(4):
                A(f"  v_cvt_pk_bf16_f32 v{T+i}, v{x+2*i}, v{x+2*i+1}")
            if not last:
                kload(m, 0); kload(m, 1)
            g0, g1, g2 = dppsum_parts(m - 1) if m > 0 else ([], [], [])
            for x_ in g0: A(x_)
            for i in range(8):
                A(f"  v_dot2_f32_bf16 v{U+i}, v{T+i//2}, v{KS+i}, 0")
                if i == 1:
                    for x_ in g1: A(x_)
                if i == 3:
                    for x_ in g2: A(x_)
            for i in range(4):
                A(f"  v_cvt_pk_bf16_f32 v{AK+i}, v{U+2*i}, v{U+2*i+1}")
            A("  s_nop 1")
            d = D + 4 * (m % 2)
            A(f"  v_mfma_f32_16x16x32_bf16 v[{d}:{d+3}], v[{AK}:{AK+3}], v[{QB}:{QB+3}], 0")
        A(f"  s_waitcnt vmcnt({16 if last else 32})")
        for i in range(4):
            A(f"  v_lshlrev_b32 v{vz(2*i)}, 16, v{ZR+i}")
            A(f"  v_and_b32 v{vz(2*i+1)}, s68, v{ZR+i}")
            A(f"  v_and_b32 v{vs(2*i)}, 0xffff, v{SR+i}")
            A(f"  v_and_b32 v{vs(2*i+1)}, s68, v{SR+i}")
        g0, g1, g2 = dppsum_parts(7)
        for x_ in g0: A(x_)
        if last:
            A("  s_nop 1")
        else:
            sload()
        for x_ in g1: A(x_)
        for x_ in g2: A(x_)
        for i in range(4):
            A(f"  v_cvt_pk_bf16_f32 v{T+i}, v{TT+2*i}, v{TT+2*i+1}")
        for i in range(4):
            A(f"  v_lshlrev_b32 v{TT+2*i}, 16, v{T+i}")
            A(f"  v_and_b32 v{TT+2*i+1}, s68, v{T+i}")
        for i in range(8):
            A(f"  v_mul_f32 v{TT+i}, s67, v{TT+i}")
        for i in range(4):
            A(f"  v_cvt_pk_bf16_f32 v{T+i}, v{TT+2*i}, v{TT+2*i+1}")
        for i in range(4):
            A(f"  v_lshlrev_b32 v{TT+2*i}, 16, v{T+i}")
            A(f"  v_and_b32 v{TT+2*i+1}, s68, v{T+i}")
        A(f"  v_max3_f32 v{X0}, v{TT}, v{TT+1}, v{TT+2}")
        A(f"  v_max3_f32 v{X1}, v{TT+3}, v{TT+4}, v{TT+5}")
        A(f"  v_max3_f32 v{X0}, v{TT+6}, v{TT+7}, v{X0}")
        A(f"  v_max_f32 v{X0}, v{X0}, v{X1}")
        A(f"  v_mov_b32 v{X1}, v{X0}")
        A("  s_nop 1")
        A(f"  v_permlane16_swap_b32 v{X0}, v{X1}")
        A(f"  v_max_f32 v{X0}, v{X0}, v{X1}")
        A(f"  v_mov_b32 v{X1}, v{X0}")
        A("  s_nop 1")
        A(f"  v_permlane32_swap_b32 v{X0}, v{X1}")
        A(f"  v_max_f32 v{X0}, v{X0}, v{X1}")
        A(f"  v_cmp_gt_f32 vcc, v{X0}, v{MR}")
        A(f"  s_cbranch_vccz L_norescale{sfx}")
        A(f"  v_max_f32 v{X0}, v{X0}, v{MR}")
        A(f"  v_sub_f32 v{X1}, v{MR}, v{X0}")
        A(f"  v_mul_f32 v{X1}, s66, v{X1}")
        A(f"  v_exp_f32 v{X1}, v{X1}")
        A(f"  v_mov_b32 v{MR}, v{X0}")
        A("  s_nop 0")
        A(f"  v_mul_f32 v{LS}, v{LS}, v{X1}")
        A(f"  v_readlane_b32 s70, v{X1}, 0")
        A(f"  v_readlane_b32 s71, v{X1}, 4")
        A("  s_nop 1")
        A(f"  v_mov_b32 v{X2}, s70")
        A(f"  v_mov_b32 v{X3}, s71")
        A(f"  v_cndmask_b32 v{X2}, v{X2}, v{X3}, s[64:65]")
        for i in range(32):
            A(f"  v_mul_f32 v{ACC+i}, v{ACC+i}, v{X2}")
        A(f"L_norescale{sfx}:")
        for i in range(8):
            A(f"  v_sub_f32 v{TT+i}, v{TT+i}, v{MR}")
        for i in range(8):
            A(f"  v_mul_f32 v{TT+i}, s66, v{TT+i}")
        for i in range(8):
            A(f"  v_exp_f32 v{TT+i}, v{TT+i}")
        A("  s_nop 0")
        for i in range(4):
            A(f"  v_cvt_pk_bf16_f32 v{PA+i}, v{TT+2*i}, v{TT+2*i+1}")
        A(f"  v_add_f32 v{X0}, v{TT}, v{TT+1}")
        A(f"  v_add_f32 v{X1}, v{TT+2}, v{TT+3}")
        A(f"  v_add_f32 v{X2}, v{TT+4}, v{TT+5}")
        A(f"  v_add_f32 v{X3}, v{TT+6}, v{TT+7}")
        A(f"  v_add_f32 v{X0}, v{X0}, v{X1}")
        A(f"  v_add_f32 v{X2}, v{X2}, v{X3}")
        A(f"  v_add_f32 v{X0}, v{X0}, v{X2}")
        A(f"  v_add_f32 v{LS}, v{LS}, v{X0}")
        for half in range(2):
            for jp in range(4):
                j = 2 * jp
                x = VB + (half * 8 + j) * 4
                y = x + 4
                A(f"  s_waitcnt vmcnt({14-2*(half*4+jp) if last else 32})")
                for i in range(8):
                    A(f"  v_cvt_f32_i32 v{x+i}, v{x+i}")
                for (b, z) in ((x, vz(j)), (y, vz(j + 1))):
                    for i in range(2):
                        A(f"  v_pk_add_f32 v[{b+2*i}:{b+2*i+1}], v[{b+2*i}:{b+2*i+1}], v[{z}:{z+1}] op_sel_hi:[1,0] neg_lo:[0,1] neg_hi:[0,1]")
                for c in range(4):
                    A(f"  v_cvt_pk_bf16_f32 v{T+c}, v{x+c}, v{y+c}")
                if not last:
                    vload(half, j); vload(half, j + 1)
                for c in range(4):
                    A(f"  v_dot2_f32_bf16 v{U+2*c}, v{T+c}, v{vs(j)}, 0")
                    A(f"  v_dot2_f32_bf16 v{U+2*c+1}, v{T+c}, v{vs(j+1)}, 0")
                for c in range(4):
                    A(f"  v_cvt_pk_bf16_f32 v{BV+4*c+jp}, v{U+2*c}, v{U+2*c+1}")
            A("  s_nop 1")
            for c in range(4):
                a = ACC + (half * 4 + c) * 4
                A(f"  v_mfma_f32_16x16x32_bf16 v[{a}:{a+3}], v[{PA}:{PA+3}], v[{BV+4*c}:{BV+4*c+3}], v[{a}:{a+3}]")

    A(".p2align 6")
    A("L_loop:")
    setitem(28)
    if dyn:
        A("  s_cmp_eq_u32 s80, 0")
        A("  s_cbranch_scc1 L_noclaim")
        A(f"  s_cmp_lt_u32 s29, {P-1}")
        A("  s_cbranch_scc1 L_noclaim")
        A("  s_mov_b64 exec, 1")
        A(f"  s_cmp_eq_u32 s29, {P-1}")
        A("  s_cbranch_scc0 L_claim")
        A(f"  buffer_load_dword v{vAT}, v{vFL}, {sDB}, 0 offen sc1")
        A("  s_branch L_claimed")
        A("L_claim:")
        A("  s_cmp_eq_u32 s74, 0")
        A("  s_cbranch_scc1 L_claimed")
        A(f"  v_mov_b32 v{vAT}, 1")
        A(f"  buffer_atomic_add v{vAT}, v{vCN}, {sWS}, 0 offen sc0 sc1")
        A("L_claimed:")
        A("  s_mov_b64 exec, -1")
        A("L_noclaim:")
    body(False)
    if ts:
        A("  s_add_u32 s82, s82, 1")
    A(f"  s_cmp_lt_u32 s29, {P}")
    A("  s_cbranch_scc0 L_dyn")
    A(f"  s_add_u32 s28, s28, {G}")
    if dyn:
        A("  s_cmp_eq_u32 s80, 0")
        A("  s_cbranch_scc1 L_st_go")
        A("  s_cmp_eq_u32 s29, 2")
        A("  s_cselect_b32 s70, s81, 0")
        A("  s_cmp_eq_u32 s70, 0")
        A("  s_cbranch_scc1 L_st_nf")
        A(f"  v_mov_b32 v{vAT}, 1")
        A("  s_mov_b64 exec, 1")
        A(f"  buffer_store_dword v{vAT}, v{vFL}, {sDB}, 0 offen sc1")
        A("  s_mov_b64 exec, -1")
        A("L_st_nf:")
        A(f"  s_cmp_eq_u32 s29, {P-1}")
        A("  s_cbranch_scc0 L_st_go")
        A(f"  v_readfirstlane_b32 s70, v{vAT}")
        A("  s_or_b32 s74, s74, s70")
        A("L_st_go:")
    A("  s_add_u32 s29, s29, 1")
    A("  s_barrier")
    A("  s_branch L_adv")
    A("L_dyn:")
    if dyn:
        A("  s_cmp_eq_u32 s80, 0")
        A("  s_cbranch_scc1 L_sync")
        A(f"  v_readfirstlane_b32 s70, v{vAT}")
        A(f"  s_add_u32 s70, s70, {P*G}")
        A(f"  s_min_u32 s70, s70, {NU}")
        A("  s_cmp_eq_u32 s74, 0")
        A(f"  s_cselect_b32 s70, {NU}, s70")
        A(f"  v_mov_b32 v{X0}, s70")
        A(f"  v_mov_b32 v{X1}, s31")
        A(f"  ds_write_b32 v{X1}, v{X0}")
        A("  s_waitcnt lgkmcnt(0)")
        A("L_sync:")
        A("  s_barrier")
        A(f"  v_mov_b32 v{X1}, s31")
        A(f"  ds_read_b32 v{X1}, v{X1}")
        A("  s_xor_b32 s31, s31, 4")
        A("  s_waitcnt lgkmcnt(0)")
        A(f"  v_readfirstlane_b32 s28, v{X1}")
    else:
        A(f"  s_mov_b32 s28, {NU}")
    A("L_adv:")
    A("  s_cmp_eq_u32 s75, s30")
    A("  s_cbranch_scc1 L_samegrp")
    kconst()
    A("L_samegrp:")
    A(f"  s_cmp_lt_u32 s28, {NU}")
    A("  s_cbranch_scc1 L_loop")
    body(True)
    A(f"  v_mov_b32 v{X1}, v{LS}")
    A("  s_nop 1")
    A(f"  v_permlane16_swap_b32 v{LS}, v{X1}")
    A(f"  v_add_f32 v{LS}, v{LS}, v{X1}")
    A(f"  v_mov_b32 v{X1}, v{LS}")
    A("  s_nop 1")
    A(f"  v_permlane32_swap_b32 v{LS}, v{X1}")
    A(f"  v_add_f32 v{LS}, v{LS}, v{X1}")
    A("  s_lshl_b32 s31, s26, 7")
    A("  s_add_u32 s31, s31, s27")
    A("  s_add_u32 s31, s31, s25")
    A("  s_lshl_b32 s72, s31, 10                 ; W*1024")
    A("  s_lshl_b32 s73, s31, 4")
    A(f"  s_add_u32 s73, s73, {ML_OFF}")
    A(f"  v_bfe_u32 v{X0}, v0, 4, 1")
    A(f"  v_lshrrev_b32 v{X1}, 5, v0")
    A(f"  v_and_b32 v{X2}, 15, v0")
    A(f"  v_lshlrev_b32 v{X0}, 9, v{X0}")
    A(f"  v_lshl_add_u32 v{X0}, v{X1}, 8, v{X0}")
    A(f"  v_lshl_add_u32 v{X0}, v{X2}, 4, v{X0}")
    A(f"  v_add_u32 v{X0}, s72, v{X0}")
    A("  s_mov_b32 s74, 0")
    A("  s_mov_b32 s75, -1                       ; lanes 32..63")
    A("  s_nop 4")
    for c in range(4):
        A(f"  v_cndmask_b32 v{W0+c}, v{ACC+c*4}, v{ACC+16+c*4}, s[74:75]")
    A(f"  buffer_store_dwordx4 v[{W0}:{W0+3}], v{X0}, {sWS}, 0 offen")
    A(f"  v_lshlrev_b32 v{X3}, 1, v0")
    A(f"  v_add_u32 v{X3}, s73, v{X3}")
    A(f"  v_mov_b32 v{X4}, v{MR}")
    A(f"  v_mov_b32 v{X5}, v{LS}")
    A("  s_mov_b64 exec, 0x11")
    A(f"  buffer_store_dwordx2 v[{X4}:{X5}], v{X3}, {sWS}, 0 offen")
    if ts:
        A("  s_memrealtime s[86:87]")
        A("  s_getreg_b32 s88, hwreg(HW_REG_XCC_ID)")
        A(f"  s_lshl_b32 s70, s2, 3")
        A("  s_add_u32 s70, s70, s3")
        A("  s_lshl_b32 s70, s70, 4")
        A(f"  s_add_u32 s70, s70, {TS_OFF}")
        A("  s_waitcnt lgkmcnt(0)")
        A("  v_mov_b32 v8, s84"); A("  v_mov_b32 v9, s86"); A("  v_mov_b32 v10, s88"); A("  v_mov_b32 v11, s82")
        A("  v_mov_b32 v12, s70")
        A("  s_mov_b64 exec, 1")
        A(f"  buffer_store_dwordx4 v[8:11], v12, {sWS}, 0 offen")
    A("L_main_end:")
    A("  s_endpgm")

    pph = part_per_head
    assert pph == 128
    A(f".globl {comb}")
    A(".p2align 8")
    A(f".type {comb},@function")
    A(f"{comb}:")
    A("  s_cmp_ge_u32 s2, 32")
    A("  s_cbranch_scc1 L_comb_end")
    A("  s_load_dwordx2 s[4:5], s[0:1], 56       ; out")
    A("  s_load_dwordx2 s[6:7], s[0:1], 72       ; ws")
    A("  v_lshrrev_b32 v4, 6, v0")
    A("  v_and_b32 v0, 63, v0")
    A("  v_readfirstlane_b32 s3, v4              ; wave")
    A("  s_lshr_b32 s20, s2, 1                   ; kvh")
    A("  s_and_b32 s21, s2, 1                    ; h")
    A(f"  s_mul_i32 s22, s20, {pph*16}")
    A("  s_lshl_b32 s23, s21, 3")
    A("  s_add_u32 s22, s22, s23")
    A(f"  s_add_u32 s22, s22, {ML_OFF}")
    A(f"  s_mul_i32 s24, s20, {pph*1024}")
    A("  s_lshl_b32 s25, s3, 15                  ; wave*32*1024")
    A("  s_add_u32 s24, s24, s25")
    A("  s_lshl_b32 s25, s21, 9")
    A("  s_add_u32 s24, s24, s25                 ; o base")
    A("  v_lshl_add_u32 v1, v0, 4, s22")
    A("  v_lshl_add_u32 v2, v0, 3, s24")
    for k in range(1, 8):
        A(f"  s_mov_b32 s{40+k}, {4096*k}")
    A("  s_waitcnt lgkmcnt(0)")
    A("  s_mov_b32 s8, s6"); A("  s_mov_b32 s9, s7"); A(f"  s_mov_b32 s10, {WS_BYTES}"); A("  s_mov_b32 s11, 0x00020000")
    A("  s_mov_b32 s12, s4"); A("  s_mov_b32 s13, s5"); A("  s_mov_b32 s14, 8192"); A("  s_mov_b32 s15, 0x00020000")
    A("  buffer_load_dwordx2 v[4:5], v1, s[8:11], 0 offen")
    A("  buffer_load_dwordx2 v[6:7], v1, s[8:11], 0 offen offset:1024")
    for i in range(32):
        so = f"s{40+i//4}" if i // 4 else "0"
        A(f"  buffer_load_dwordx2 v[{16+2*i}:{17+2*i}], v2, s[8:11], {so} offen offset:{(i%4)*1024}")
    A(f"  s_mov_b32 s66, 0x{LOG2E:08x}")
    A("  s_waitcnt vmcnt(32)")
    def allreduce(op, v, t):
        for dpp in ("quad_perm:[1,0,3,2]", "quad_perm:[2,3,0,1]", "row_half_mirror", "row_mirror"):
            A("  s_nop 1")
            A(f"  {op}_dpp v{v}, v{v}, v{v} {dpp} row_mask:0xf bank_mask:0xf")
        for sw in ("v_permlane16_swap_b32", "v_permlane32_swap_b32"):
            A(f"  v_mov_b32 v{t}, v{v}")
            A("  s_nop 1")
            A(f"  {sw} v{v}, v{t}")
            A(f"  {op} v{v}, v{v}, v{t}")
    A("  v_max_f32 v8, v4, v6")
    allreduce("v_max_f32", 8, 9)
    A("  v_sub_f32 v10, v4, v8")
    A("  v_sub_f32 v11, v6, v8")
    A("  v_mul_f32 v10, s66, v10")
    A("  v_mul_f32 v11, s66, v11")
    A("  v_exp_f32 v10, v10                      ; wA")
    A("  v_exp_f32 v11, v11                      ; wB")
    A("  s_nop 0")
    A("  v_mul_f32 v12, v10, v5")
    A("  v_fmac_f32 v12, v11, v7")
    allreduce("v_add_f32", 12, 9)
    A("  s_cmp_ge_u32 s3, 2")
    A("  s_cselect_b64 s[30:31], -1, 0")
    A("  s_and_b32 s32, s3, 1")
    A("  s_cmp_eq_u32 s32, 1")
    A("  s_cselect_b64 s[32:33], -1, 0")
    A("  v_cndmask_b32 v10, v10, v11, s[30:31]")
    A("  v_mov_b32 v11, v10")
    A("  s_nop 1")
    A("  v_permlane32_swap_b32 v10, v11")
    A("  v_cndmask_b32 v10, v10, v11, s[32:33]")
    A("  v_mov_b32 v14, 0")
    A("  v_mov_b32 v15, 0")
    A("  s_waitcnt vmcnt(0)")
    for b in range(4):
        for i in range(8):
            A(f"  v_readlane_b32 s{50+i}, v10, {b*8+i}")
        A("  s_nop 1")
        for i in range(8):
            k = b * 8 + i
            A(f"  v_fmac_f32 v14, s{50+i}, v{16+2*k}")
            A(f"  v_fmac_f32 v15, s{50+i}, v{17+2*k}")
    A("  s_lshl_b32 s25, s3, 9")
    A("  v_lshl_add_u32 v3, v0, 3, s25")
    A("  ds_write_b64 v3, v[14:15]")
    A("  s_waitcnt lgkmcnt(0)")
    A("  s_barrier")
    A("  s_cmp_lg_u32 s3, 0")
    A("  s_cbranch_scc1 L_comb_end")
    A("  v_lshlrev_b32 v3, 3, v0")
    A("  ds_read_b64 v[16:17], v3 offset:512")
    A("  ds_read_b64 v[18:19], v3 offset:1024")
    A("  ds_read_b64 v[20:21], v3 offset:1536")
    A("  v_rcp_f32 v13, v12")
    A("  s_waitcnt lgkmcnt(0)")
    A("  v_add_f32 v14, v14, v16")
    A("  v_add_f32 v15, v15, v17")
    A("  v_add_f32 v18, v18, v20")
    A("  v_add_f32 v19, v19, v21")
    A("  v_add_f32 v14, v14, v18")
    A("  v_add_f32 v15, v15, v19")
    A("  v_fma_f32 v9, -v12, v13, 1.0")
    A("  v_fma_f32 v13, v9, v13, v13")
    A("  v_mul_f32 v14, v14, v13")
    A("  v_mul_f32 v15, v15, v13")
    A("  v_cvt_pk_bf16_f32 v14, v14, v15")
    A("  s_lshl_b32 s25, s2, 8")
    A("  v_lshl_add_u32 v3, v0, 2, s25")
    A("  buffer_store_dword v14, v3, s[12:15], 0 offen")
    A("L_comb_end:")
    A("  s_endpgm")

    A('.section .rodata,"a"')
    for name, nv, ns in ((main, 256, 96), (comb, 80, 72)):
        A(".p2align 6")
        A(f".amdhsa_kernel {name}")
        A(f"  .amdhsa_next_free_vgpr {nv}")
        A(f"  .amdhsa_next_free_sgpr {ns}")
        A(f"  .amdhsa_accum_offset {nv}")
        A("  .amdhsa_group_segment_fixed_size 0")
        A("  .amdhsa_kernarg_size 80")
        A("  .amdhsa_user_sgpr_count 2")
        A("  .amdhsa_user_sgpr_kernarg_segment_ptr 1")
        A("  .amdhsa_system_sgpr_workgroup_id_x 1")
        A("  .amdhsa_float_denorm_mode_32 3")
        A(".end_amdhsa_kernel")
    return "\n".join(L) + "\n"


if __name__ == "__main__":
    out = sys.argv[1] if len(sys.argv) > 1 else f"cdna_kernels/{BASE}.s"
    kw = {}
    for a in sys.argv[2:]:
        k, v = a.split("=")
        kw[k] = int(v) if v.lstrip("-").isdigit() else v
    open(out, "w").write(gen(**kw))
    print("wrote", out, kw)
```

```python
import sys

BASE = "standalone__kv_cache_quant_int4_int2_kv_with_per_channel_or_per_token_scales__decode"
HEADER = """; Kernarg layout for this problem (80 bytes, ptrs only, base s[0:1]):
"""

LOG2E = 0x3fb8aa3b
SCALE = 0x3db504f3


def gen(G=16, P=12, flags="nt", sflags="nt", dyn=1, ts=0, map="jkw", csp=8, wa=0, hs=1, js=0):
    L = []
    A = L.append
    nwg, wpb = 256, 8
    totw = nwg * wpb
    part_per_head = totw // 16
    ML_OFF = totw * 1024
    CNT_OFF = 4 << 20
    TS_OFF = 5 << 20
    WS_BYTES = 6 << 20
    lgG = G.bit_length() - 1
    NU = 16 * G
    if not dyn:
        P = 16
    LDS_SLOT = 32768
    main = BASE + "_kernel"
    assert G in (4, 8, 16)
    TK_OFF = 128
    A(HEADER.rstrip())
    A(f"; @launch grid=({nwg},1,1) block=({wpb*64},1,1) lds={LDS_SLOT+64}")
    A('.amdgcn_target "amdgcn-amd-amdhsa--gfx950"')
    A(".text")

    vK, vV, vS = 1, 2, 3
    QB = 4
    KZ = 8
    KS = 16
    SR = 24
    ZR = 28
    VZ = 32
    T = 48
    U = 52
    AK = 60
    D = 64
    TT = 72
    BV = 60
    PA = 80
    ACC = 84
    MR, LS = 116, 117
    X0, X1, X2, X3, X4, X5 = 118, 119, 120, 121, 122, 123
    W0 = 124
    vAT, vCN, vFL, vLD = 124, 125, 126, 127
    KB = 128
    VB = 192

    def vz(j):
        return VZ + 2 * j
    def vs(j):
        return VZ + 2 * j + 1

    A(f".globl {main}")
    A(".p2align 8")
    A(f".type {main},@function")
    A(f"{main}:")
    A(f"  s_cmp_ge_u32 s2, {nwg}")
    A("  s_cbranch_scc1 L_main_end")
    if ts:
        A("  s_memrealtime s[84:85]")
    A("  s_load_dwordx8 s[4:11], s[0:1], 0")
    A("  s_load_dwordx4 s[12:15], s[0:1], 32")
    A("  s_load_dwordx2 s[16:17], s[0:1], 48    ; vz")
    A("  s_load_dwordx4 s[20:23], s[0:1], 64")
    A("  v_lshrrev_b32 v4, 6, v0")
    A("  v_and_b32 v0, 63, v0                    ; lane")
    A("  v_readfirstlane_b32 s3, v4")
    A("  s_load_dwordx2 s[90:91], s[0:1], 56    ; out")
    A(f"  s_lshr_b32 s24, s2, {lgG}                ; pool")
    A(f"  s_and_b32 s25, s2, {G-1}")
    A("  s_lshr_b32 s26, s2, 4")
    nb = {"k": 4, "j": 4, "w": 3}
    toks, i = [], 0
    while i < len(map):
        if i + 1 < len(map) and map[i + 1].isdigit():
            toks.append((map[i], int(map[i + 1]))); i += 2
        else:
            toks += [(map[i], b_) for b_ in reversed(range(nb[map[i]]))]; i += 1
    assert len(toks) == 11 and len(set(toks)) == 11
    dest = {t: 10 - n for n, t in enumerate(toks)}
    def scatter(acc, src, f, lo, hi, tmp):
        b_ = lo
        while b_ < hi:
            e = b_
            while e + 1 < hi and dest[(f, e + 1)] == dest[(f, e)] + 1:
                e += 1
            A(f"  s_bfe_u32 s{tmp}, s{src}, {b_ | ((e - b_ + 1) << 16)}")
            if dest[(f, b_)]:
                A(f"  s_lshl_b32 s{tmp}, s{tmp}, {dest[(f, b_)]}")
            A(f"  s_add_u32 s{acc}, s{acc}, s{tmp}")
            b_ = e + 1
    A("  s_mov_b32 s27, 0")
    scatter(27, 2, "j", lgG, 4, 28)
    scatter(27, 3, "w", 0, 3, 28)
    A("  s_lshl_b32 s83, s2, 11")
    A(f"  s_mul_i32 s69, s3, {wa}")
    A(f"  s_mul_i32 s28, s26, {hs}")
    A("  s_add_u32 s69, s69, s28")
    if js:
        A(f"  s_bfe_u32 s28, s2, {lgG | ((4 - lgG) << 16)}")
        A(f"  s_mul_i32 s28, s28, {js}")
        A("  s_add_u32 s69, s69, s28")
    A("  s_lshl_b32 s18, s26, 25")
    A("  s_lshl_b32 s19, s26, 17")
    A("  v_lshrrev_b32 v4, 4, v0                 ; g")
    A("  v_bfe_u32 v5, v0, 2, 2                  ; a")
    A("  v_and_b32 v6, 3, v0                     ; r")
    A("  v_and_b32 v7, 15, v0                    ; n")
    A("  v_lshlrev_b32 v1, 12, v5")
    A("  v_lshl_add_u32 v1, v4, 6, v1")
    A("  v_lshl_add_u32 v1, v6, 4, v1            ; voffK")
    A("  v_lshlrev_b32 v2, 12, v4")
    A("  v_lshl_add_u32 v2, v7, 4, v2            ; voffV")
    A("  v_lshlrev_b32 v3, 4, v4                 ; voffS")
    A("  v_bfe_u32 v8, v0, 2, 1                  ; h")
    A("  v_lshlrev_b32 v9, 5, v4                 ; 32g")
    A("  v_lshl_add_u32 v9, v6, 3, v9            ; 32g + 8r")
    A("  s_lshl_b32 s28, s26, 9                  ; kvh*512")
    A("  v_lshl_add_u32 v10, v8, 8, v9")
    A("  v_add_u32 v10, s28, v10                 ; q offset")
    A("  v_add_u32 v11, s28, v9")
    A("  s_lshl_b32 s28, s3, 12")
    A(f"  v_lshl_add_u32 v{vLD}, v0, 4, s28")
    A(f"  s_mul_i32 s28, s24, {csp if csp > 64 else 1 << csp}")
    A(f"  s_add_u32 s28, s28, {CNT_OFF}")
    A(f"  v_mov_b32 v{vCN}, s28")
    A(f"  v_mov_b32 v{vFL}, s24")
    A(f"  v_mov_b32 v{vAT}, 0")
    A("  s_waitcnt lgkmcnt(0)")
    def srd(d, lo, hi, off, nrec):
        if off is None:
            A(f"  s_mov_b32 s{d}, s{lo}")
            A(f"  s_mov_b32 s{d+1}, s{hi}")
        else:
            A(f"  s_add_u32 s{d}, s{lo}, s{off}")
            A(f"  s_addc_u32 s{d+1}, s{hi}, 0")
        A(f"  s_mov_b32 s{d+2}, {nrec}")
        A(f"  s_mov_b32 s{d+3}, 0x00020000")
    srd(32, 4, 5, None, 8192)
    srd(36, 6, 7, 18, 1 << 25)
    srd(40, 8, 9, 18, 1 << 25)
    srd(44, 10, 11, None, 8192)
    srd(48, 12, 13, None, 8192)
    srd(52, 14, 15, 19, 1 << 17)
    srd(56, 16, 17, 19, 1 << 17)
    srd(60, 22, 23, None, WS_BYTES)
    srd(76, 20, 21, None, 256)
    srd(92, 90, 91, None, 8192)
    sQ, sK, sV, sKS, sKZ, sVS, sVZ, sWS, sDB = ("s[32:35]", "s[36:39]", "s[40:43]", "s[44:47]", "s[48:51]", "s[52:55]", "s[56:59]", "s[60:63]", "s[76:79]")
    A("  s_cmp_eq_u32 s25, 0")
    A("  s_cselect_b32 s74, 1, 0")
    A("  s_cmp_eq_u32 s3, 0")
    A("  s_cselect_b32 s80, 1, 0")
    A("  s_and_b32 s81, s74, s80")
    if dyn:
        A("  s_cmp_eq_u32 s81, 0")
        A("  s_cbranch_scc1 L_noinit")
        A("  s_mov_b64 exec, 1")
        A(f"  buffer_store_dword v{vAT}, v{vCN}, {sWS}, 0 offen sc1   ; counter = 0")
        A("  s_mov_b64 exec, -1")
        A("L_noinit:")

    def setitem(su):
        A(f"  s_lshr_b32 s75, s{su}, {lgG}")
        A("  s_add_u32 s75, s75, s69")
        A("  s_mov_b32 s72, s27")
        scatter(72, 75, "k", 0, 4, 73)
        scatter(72, su, "j", 0, lgG, 73)
        A("  s_lshr_b32 s75, s72, 10")
        A("  s_lshl_b32 s73, s72, 6")
        A("  s_lshl_b32 s72, s72, 14")

    c0 = 48
    A(f"  buffer_load_dwordx2 v[{QB}:{QB+1}], v10, {sQ}, 0 offen")
    A(f"  buffer_load_dwordx2 v[{QB+2}:{QB+3}], v10, {sQ}, 0 offen offset:128")
    for g in range(2):
        c = c0 + 8 * g
        A(f"  buffer_load_dwordx2 v[{c}:{c+1}], v11, {sKZ}, 0 offen offset:{256*g}")
        A(f"  buffer_load_dwordx2 v[{c+2}:{c+3}], v11, {sKZ}, 0 offen offset:{256*g+128}")
        A(f"  buffer_load_dwordx2 v[{c+4}:{c+5}], v11, {sKS}, 0 offen offset:{256*g}")
        A(f"  buffer_load_dwordx2 v[{c+6}:{c+7}], v11, {sKS}, 0 offen offset:{256*g+128}")
    setitem(25)

    def kload(m, u):
        r = KB + (2 * m + u) * 4
        A(f"  buffer_load_dwordx4 v[{r}:{r+3}], v{vK}, {sK}, s72 offen offset:{m*512+u*256} {flags}")
    def vload(half, j):
        r = VB + (half * 8 + j) * 4
        A(f"  buffer_load_dwordx4 v[{r}:{r+3}], v{vV}, {sV}, s72 offen offset:{j*512+half*256} {flags}")
    def sload():
        A(f"  buffer_load_dwordx4 v[{SR}:{SR+3}], v{vS}, {sVS}, s73 offen {sflags}")
        A(f"  buffer_load_dwordx4 v[{ZR}:{ZR+3}], v{vS}, {sVZ}, s73 offen {sflags}")
    for m in range(8):
        kload(m, 0); kload(m, 1)
    sload()
    for half in range(2):
        for j in range(8):
            vload(half, j)
    for i in range(32):
        A(f"  v_mov_b32 v{ACC+i}, 0")
    A(f"  v_mov_b32 v{MR}, 0xff800000")
    A(f"  v_mov_b32 v{LS}, 0")
    A("  s_mov_b32 s64, 0xffff0000")
    A("  s_mov_b32 s65, 0xffff0000")
    A(f"  s_mov_b32 s66, 0x{LOG2E:08x}")
    A(f"  s_mov_b32 s67, 0x{SCALE:08x}")
    A("  s_mov_b32 s68, 0xffff0000")
    A(f"  s_add_u32 s28, s25, {G}")
    A("  s_mov_b32 s29, 2")
    A(f"  s_mov_b32 s31, {LDS_SLOT}")
    A("  s_mov_b32 s82, 0")
    A("  s_mov_b32 s89, 0")
    A("  s_waitcnt vmcnt(34)")
    for i in range(4):
        A(f"  ds_write_b128 v{vLD}, v[{c0+4*i}:{c0+4*i+3}] offset:{1024*i}")
    A("  s_waitcnt lgkmcnt(0)")

    def kconst():
        A("  s_mov_b32 s30, s75")
        A("  s_lshl_b32 s70, s75, 11")
        A(f"  v_add_u32 v{X0}, s70, v{vLD}")
        A(f"  ds_read_b128 v[{c0}:{c0+3}], v{X0}")
        A(f"  ds_read_b128 v[{c0+4}:{c0+7}], v{X0} offset:1024")
        A("  s_waitcnt lgkmcnt(0)")
        for i in range(4):
            A(f"  v_lshlrev_b32 v{KZ+2*i}, 16, v{c0+i}")
            A(f"  v_and_b32 v{KZ+2*i+1}, s68, v{c0+i}")
            A(f"  v_and_b32 v{KS+2*i}, 0xffff, v{c0+4+i}")
            A(f"  v_and_b32 v{KS+2*i+1}, s68, v{c0+4+i}")
    kconst()

    def dppsum_parts(m):
        d = D + 4 * (m % 2)
        t = TT + m
        g0 = [f"  v_mov_b32_dpp v{X4}, v{d} quad_perm:[0,0,0,0] row_mask:0xf bank_mask:0xf",
              f"  v_mov_b32_dpp v{X5}, v{d+2} quad_perm:[2,2,2,2] row_mask:0xf bank_mask:0xf"]
        g1 = [f"  v_add_f32_dpp v{X4}, v{d+1}, v{X4} quad_perm:[1,1,1,1] row_mask:0xf bank_mask:0xf",
              f"  v_add_f32_dpp v{X5}, v{d+3}, v{X5} quad_perm:[3,3,3,3] row_mask:0xf bank_mask:0xf"]
        g2 = [f"  v_add_f32 v{t}, v{X4}, v{X5}"]
        return g0, g1, g2

    def body(last):
        sfx = "_last" if last else ""
        for m in range(8):
            x = KB + m * 8
            A(f"  s_waitcnt vmcnt({32-2*m if last else 32})")
            for i in range(8):
                A(f"  v_cvt_f32_i32 v{x+i}, v{x+i}")
            for i in range(4):
                A(f"  v_pk_add_f32 v[{x+2*i}:{x+2*i+1}], v[{x+2*i}:{x+2*i+1}], v[{KZ+2*i}:{KZ+2*i+1}] neg_lo:[0,1] neg_hi:[0,1]")
            for i in range(4):
                A(f"  v_cvt_pk_bf16_f32 v{T+i}, v{x+2*i}, v{x+2*i+1}")
            if not last:
                kload(m, 0); kload(m, 1)
            g0, g1, g2 = dppsum_parts(m - 1) if m > 0 else ([], [], [])
            for x_ in g0: A(x_)
            for i in range(8):
                A(f"  v_dot2_f32_bf16 v{U+i}, v{T+i//2}, v{KS+i}, 0")
                if i == 1:
                    for x_ in g1: A(x_)
                if i == 3:
                    for x_ in g2: A(x_)
            for i in range(4):
                A(f"  v_cvt_pk_bf16_f32 v{AK+i}, v{U+2*i}, v{U+2*i+1}")
            A("  s_nop 1")
            d = D + 4 * (m % 2)
            A(f"  v_mfma_f32_16x16x32_bf16 v[{d}:{d+3}], v[{AK}:{AK+3}], v[{QB}:{QB+3}], 0")
        A(f"  s_waitcnt vmcnt({16 if last else 32})")
        for i in range(4):
            A(f"  v_lshlrev_b32 v{vz(2*i)}, 16, v{ZR+i}")
            A(f"  v_and_b32 v{vz(2*i+1)}, s68, v{ZR+i}")
            A(f"  v_and_b32 v{vs(2*i)}, 0xffff, v{SR+i}")
            A(f"  v_and_b32 v{vs(2*i+1)}, s68, v{SR+i}")
        g0, g1, g2 = dppsum_parts(7)
        for x_ in g0: A(x_)
        if last:
            A("  s_nop 1")
        else:
            sload()
        for x_ in g1: A(x_)
        for x_ in g2: A(x_)
        for i in range(4):
            A(f"  v_cvt_pk_bf16_f32 v{T+i}, v{TT+2*i}, v{TT+2*i+1}")
        for i in range(4):
            A(f"  v_lshlrev_b32 v{TT+2*i}, 16, v{T+i}")
            A(f"  v_and_b32 v{TT+2*i+1}, s68, v{T+i}")
        for i in range(8):
            A(f"  v_mul_f32 v{TT+i}, s67, v{TT+i}")
        for i in range(4):
            A(f"  v_cvt_pk_bf16_f32 v{T+i}, v{TT+2*i}, v{TT+2*i+1}")
        for i in range(4):
            A(f"  v_lshlrev_b32 v{TT+2*i}, 16, v{T+i}")
            A(f"  v_and_b32 v{TT+2*i+1}, s68, v{T+i}")
        A(f"  v_max3_f32 v{X0}, v{TT}, v{TT+1}, v{TT+2}")
        A(f"  v_max3_f32 v{X1}, v{TT+3}, v{TT+4}, v{TT+5}")
        A(f"  v_max3_f32 v{X0}, v{TT+6}, v{TT+7}, v{X0}")
        A(f"  v_max_f32 v{X0}, v{X0}, v{X1}")
        A(f"  v_mov_b32 v{X1}, v{X0}")
        A("  s_nop 1")
        A(f"  v_permlane16_swap_b32 v{X0}, v{X1}")
        A(f"  v_max_f32 v{X0}, v{X0}, v{X1}")
        A(f"  v_mov_b32 v{X1}, v{X0}")
        A("  s_nop 1")
        A(f"  v_permlane32_swap_b32 v{X0}, v{X1}")
        A(f"  v_max_f32 v{X0}, v{X0}, v{X1}")
        A(f"  v_cmp_gt_f32 vcc, v{X0}, v{MR}")
        A(f"  s_cbranch_vccz L_norescale{sfx}")
        A(f"  v_max_f32 v{X0}, v{X0}, v{MR}")
        A(f"  v_sub_f32 v{X1}, v{MR}, v{X0}")
        A(f"  v_mul_f32 v{X1}, s66, v{X1}")
        A(f"  v_exp_f32 v{X1}, v{X1}")
        A(f"  v_mov_b32 v{MR}, v{X0}")
        A("  s_nop 0")
        A(f"  v_mul_f32 v{LS}, v{LS}, v{X1}")
        A(f"  v_readlane_b32 s70, v{X1}, 0")
        A(f"  v_readlane_b32 s71, v{X1}, 4")
        A("  s_nop 1")
        A(f"  v_mov_b32 v{X2}, s70")
        A(f"  v_mov_b32 v{X3}, s71")
        A(f"  v_cndmask_b32 v{X2}, v{X2}, v{X3}, s[64:65]")
        for i in range(32):
            A(f"  v_mul_f32 v{ACC+i}, v{ACC+i}, v{X2}")
        A(f"L_norescale{sfx}:")
        for i in range(8):
            A(f"  v_sub_f32 v{TT+i}, v{TT+i}, v{MR}")
        for i in range(8):
            A(f"  v_mul_f32 v{TT+i}, s66, v{TT+i}")
        for i in range(8):
            A(f"  v_exp_f32 v{TT+i}, v{TT+i}")
        A("  s_nop 0")
        for i in range(4):
            A(f"  v_cvt_pk_bf16_f32 v{PA+i}, v{TT+2*i}, v{TT+2*i+1}")
        A(f"  v_add_f32 v{X0}, v{TT}, v{TT+1}")
        A(f"  v_add_f32 v{X1}, v{TT+2}, v{TT+3}")
        A(f"  v_add_f32 v{X2}, v{TT+4}, v{TT+5}")
        A(f"  v_add_f32 v{X3}, v{TT+6}, v{TT+7}")
        A(f"  v_add_f32 v{X0}, v{X0}, v{X1}")
        A(f"  v_add_f32 v{X2}, v{X2}, v{X3}")
        A(f"  v_add_f32 v{X0}, v{X0}, v{X2}")
        A(f"  v_add_f32 v{LS}, v{LS}, v{X0}")
        for half in range(2):
            for jp in range(4):
                j = 2 * jp
                x = VB + (half * 8 + j) * 4
                y = x + 4
                A(f"  s_waitcnt vmcnt({14-2*(half*4+jp) if last else 32})")
                for i in range(8):
                    A(f"  v_cvt_f32_i32 v{x+i}, v{x+i}")
                for (b, z) in ((x, vz(j)), (y, vz(j + 1))):
                    for i in range(2):
                        A(f"  v_pk_add_f32 v[{b+2*i}:{b+2*i+1}], v[{b+2*i}:{b+2*i+1}], v[{z}:{z+1}] op_sel_hi:[1,0] neg_lo:[0,1] neg_hi:[0,1]")
                for c in range(4):
                    A(f"  v_cvt_pk_bf16_f32 v{T+c}, v{x+c}, v{y+c}")
                if not last:
                    vload(half, j); vload(half, j + 1)
                for c in range(4):
                    A(f"  v_dot2_f32_bf16 v{U+2*c}, v{T+c}, v{vs(j)}, 0")
                    A(f"  v_dot2_f32_bf16 v{U+2*c+1}, v{T+c}, v{vs(j+1)}, 0")
                for c in range(4):
                    A(f"  v_cvt_pk_bf16_f32 v{BV+4*c+jp}, v{U+2*c}, v{U+2*c+1}")
            A("  s_nop 1")
            for c in range(4):
                a = ACC + (half * 4 + c) * 4
                A(f"  v_mfma_f32_16x16x32_bf16 v[{a}:{a+3}], v[{PA}:{PA+3}], v[{BV+4*c}:{BV+4*c+3}], v[{a}:{a+3}]")

    A(".p2align 6")
    A("L_loop:")
    setitem(28)
    if dyn:
        A("  s_cmp_eq_u32 s80, 0")
        A("  s_cbranch_scc1 L_noclaim")
        A(f"  s_cmp_lt_u32 s29, {P-1}")
        A("  s_cbranch_scc1 L_noclaim")
        A("  s_mov_b64 exec, 1")
        A(f"  s_cmp_eq_u32 s29, {P-1}")
        A("  s_cbranch_scc0 L_claim")
        A(f"  buffer_load_ubyte v{vAT}, v{vFL}, {sDB}, 0 offen sc1")
        A("  s_branch L_claimed")
        A("L_claim:")
        A("  s_cmp_eq_u32 s74, 0")
        A("  s_cbranch_scc1 L_claimed")
        A(f"  v_mov_b32 v{vAT}, 1")
        A(f"  buffer_atomic_add v{vAT}, v{vCN}, {sWS}, 0 offen sc0 sc1")
        A("L_claimed:")
        A("  s_mov_b64 exec, -1")
        A("L_noclaim:")
    body(False)
    if ts:
        A("  s_add_u32 s82, s82, 1")
    A(f"  s_cmp_lt_u32 s29, {P}")
    A("  s_cbranch_scc0 L_dyn")
    A(f"  s_add_u32 s28, s28, {G}")
    A("  s_cmp_eq_u32 s80, 0")
    A("  s_cbranch_scc1 L_st_go")
    A("  s_cmp_eq_u32 s29, 2")
    A("  s_cbranch_scc0 L_st_nf")
    for i in range(4):
        A(f"  v_mov_b32 v{X0+i}, -1")
    A(f"  v_lshlrev_b32 v{X4}, 4, v0")
    A(f"  v_lshrrev_b32 v{X5}, 1, v0")
    A(f"  buffer_store_dwordx4 v[{X0}:{X0+3}], v{X4}, {sWS}, s83 offen sc1")
    A("  s_mov_b64 exec, 0x10001")
    A(f"  buffer_store_dwordx2 v[{X0}:{X0+1}], v{X5}, {sWS}, s83 offen offset:1024 sc1")
    A("  s_mov_b64 exec, -1")
    if dyn:
        A("  s_cmp_eq_u32 s81, 0")
        A("  s_cbranch_scc1 L_st_nf")
        A(f"  v_mov_b32 v{vAT}, 1")
        A("  s_mov_b64 exec, 1")
        A(f"  buffer_store_byte v{vAT}, v{vFL}, {sDB}, 0 offen sc1")
        A("  s_mov_b64 exec, -1")
    A("L_st_nf:")
    if dyn:
        A(f"  s_cmp_eq_u32 s29, {P-1}")
        A("  s_cbranch_scc0 L_st_go")
        A(f"  v_readfirstlane_b32 s70, v{vAT}")
        A("  s_or_b32 s74, s74, s70")
    A("L_st_go:")
    A("  s_add_u32 s29, s29, 1")
    A("  s_barrier")
    A("  s_branch L_adv")
    A("L_dyn:")
    if ts:
        A("  s_cmp_lg_u32 s89, 0")
        A("  s_cbranch_scc1 L_tsd")
        A("  s_memrealtime s[86:87]")
        A("  s_waitcnt lgkmcnt(0)")
        A("  s_sub_u32 s89, s86, s84")
        A("L_tsd:")
    if dyn:
        A("  s_cmp_eq_u32 s80, 0")
        A("  s_cbranch_scc1 L_sync")
        A(f"  v_readfirstlane_b32 s70, v{vAT}")
        A(f"  s_add_u32 s70, s70, {P*G}")
        A(f"  s_min_u32 s70, s70, {NU}")
        A("  s_cmp_eq_u32 s74, 0")
        A(f"  s_cselect_b32 s70, {NU}, s70")
        A(f"  v_mov_b32 v{X0}, s70")
        A(f"  v_mov_b32 v{X1}, s31")
        A(f"  ds_write_b32 v{X1}, v{X0}")
        A("  s_waitcnt lgkmcnt(0)")
        A("L_sync:")
        A("  s_barrier")
        A(f"  v_mov_b32 v{X1}, s31")
        A(f"  ds_read_b32 v{X1}, v{X1}")
        A("  s_xor_b32 s31, s31, 4")
        A("  s_waitcnt lgkmcnt(0)")
        A(f"  v_readfirstlane_b32 s28, v{X1}")
    else:
        A(f"  s_mov_b32 s28, {NU}")
    A("L_adv:")
    A("  s_cmp_eq_u32 s75, s30")
    A("  s_cbranch_scc1 L_samegrp")
    kconst()
    A("L_samegrp:")
    A(f"  s_cmp_lt_u32 s28, {NU}")
    A("  s_cbranch_scc1 L_loop")
    A("  s_cmp_eq_u32 s80, 0")
    A("  s_cbranch_scc1 L_notick")
    A("  s_lshl_b32 s70, s26, 2")
    A(f"  s_add_u32 s70, s70, {TK_OFF}")
    A(f"  v_mov_b32 v{vFL}, s70")
    A(f"  v_mov_b32 v{vAT}, 1")
    A("  s_mov_b64 exec, 1")
    A(f"  buffer_atomic_add v{vAT}, v{vFL}, {sDB}, 0 offen sc0 sc1   ; ticket")
    A("  s_mov_b64 exec, -1")
    A("L_notick:")
    body(True)
    EO, EM, EL = 52, 56, 57
    A(f"  v_mov_b32 v{X1}, v{LS}")
    A("  s_nop 1")
    A(f"  v_permlane16_swap_b32 v{LS}, v{X1}")
    A(f"  v_add_f32 v{LS}, v{LS}, v{X1}")
    A(f"  v_mov_b32 v{X1}, v{LS}")
    A("  s_nop 1")
    A(f"  v_permlane32_swap_b32 v{LS}, v{X1}")
    A(f"  v_add_f32 v{LS}, v{LS}, v{X1}")
    A(f"  v_readfirstlane_b32 s69, v{vAT}")
    A(f"  v_readlane_b32 s70, v{MR}, 0")
    A(f"  v_readlane_b32 s71, v{MR}, 4")
    A(f"  v_readlane_b32 s72, v{LS}, 0")
    A(f"  v_readlane_b32 s73, v{LS}, 4")
    A(f"  v_lshlrev_b32 v{X4}, 4, v0               ; lane*16")
    A(f"  v_lshrrev_b32 v{X5}, 1, v0")
    A(f"  v_and_b32 v{X5}, 8, v{X5}")
    A("  s_cmp_eq_u32 s69, 15")
    A("  s_cselect_b32 s69, s80, 0")
    for j in range(1, 16):
        A(f"  s_xor_b32 s{3+j}, s83, {j << 11}")
    def poll():
        for j in range(1, 16):
            r = KB + 8 * (j - 1)
            A(f"  buffer_load_dwordx4 v[{r}:{r+3}], v{X4}, {sWS}, s{3+j} offen sc1")
            A(f"  buffer_load_dwordx2 v[{r+4}:{r+5}], v{X5}, {sWS}, s{3+j} offen offset:1024 sc1")
    A("  s_cmp_eq_u32 s69, 0")
    A("  s_cbranch_scc1 L_nopoll")
    poll()
    A("L_nopoll:")
    A(f"  v_mov_b32 v{X0}, s70")
    A(f"  v_mov_b32 v{X1}, s71")
    A(f"  v_mov_b32 v{X2}, s72")
    A(f"  v_mov_b32 v{X3}, s73")
    A(f"  v_cndmask_b32 v{EM}, v{X0}, v{X1}, s[64:65]")
    A(f"  v_cndmask_b32 v{EL}, v{X2}, v{X3}, s[64:65]")
    A("  s_mov_b32 s74, 0")
    A("  s_mov_b32 s75, -1                       ; lanes 32..63")
    A(f"  v_lshlrev_b32 v{X0}, 3, v0")
    A(f"  v_sub_u32 v{X0}, v{vLD}, v{X0}")
    A("  s_nop 4")
    for c in range(4):
        A(f"  v_cndmask_b32 v{EO+c}, v{ACC+c*4}, v{ACC+16+c*4}, s[74:75]")
    A(f"  ds_write_b128 v{vLD}, v[{EO}:{EO+3}]")
    A(f"  ds_write_b64 v{X0}, v[{EM}:{EL}] offset:1024")
    if ts:
        A("  s_memrealtime s[86:87]")
        A("  s_getreg_b32 s88, hwreg(HW_REG_XCC_ID)")
        A(f"  s_lshl_b32 s70, s2, 3")
        A("  s_add_u32 s70, s70, s3")
        A("  s_lshl_b32 s70, s70, 4")
        A(f"  s_add_u32 s70, s70, {TS_OFF}")
        A("  s_lshl_b32 s89, s89, 8")
        A("  s_or_b32 s88, s88, s89")
        A("  s_waitcnt lgkmcnt(0)")
        A("  v_mov_b32 v8, s84"); A("  v_mov_b32 v9, s86"); A("  v_mov_b32 v10, s88"); A("  v_mov_b32 v11, s82")
        A("  v_mov_b32 v12, s70")
        A("  s_mov_b64 exec, 1")
        A(f"  buffer_store_dwordx4 v[8:11], v12, {sWS}, 0 offen")
        A("  s_mov_b64 exec, -1")
    A("  s_waitcnt lgkmcnt(0)")
    A("  s_barrier")
    A("  s_cmp_eq_u32 s80, 0")
    A("  s_cbranch_scc1 L_main_end")
    RO, RM = ACC, VZ
    for w in range(1, 8):
        A(f"  ds_read_b128 v[{RO+4*w}:{RO+4*w+3}], v{vLD} offset:{4096*w}")
        A(f"  ds_read_b64 v[{RM+2*w}:{RM+2*w+1}], v{X0} offset:{4096*w+1024}")
    A("  s_waitcnt lgkmcnt(0)")

    def merge(items):
        ms = [m for _, m, _ in items]
        A(f"  v_max3_f32 v{X0}, v{EM}, v{ms[0]}, v{ms[1]}")
        k = 2
        while k < len(ms):
            if k + 1 < len(ms):
                A(f"  v_max3_f32 v{X0}, v{X0}, v{ms[k]}, v{ms[k+1]}"); k += 2
            else:
                A(f"  v_max_f32 v{X0}, v{X0}, v{ms[k]}"); k += 1
        for m in [EM] + ms:
            A(f"  v_sub_f32 v{m}, v{m}, v{X0}")
        for m in [EM] + ms:
            A(f"  v_mul_f32 v{m}, s66, v{m}")
        for m in [EM] + ms:
            A(f"  v_exp_f32 v{m}, v{m}")
        A("  s_nop 0")
        for c in range(4):
            A(f"  v_mul_f32 v{EO+c}, v{EO+c}, v{EM}")
        A(f"  v_mul_f32 v{EL}, v{EL}, v{EM}")
        for o, m, l in items:
            for c in range(4):
                A(f"  v_fmac_f32 v{EO+c}, v{o+c}, v{m}")
            A(f"  v_fmac_f32 v{EL}, v{l}, v{m}")
        A(f"  v_mov_b32 v{EM}, v{X0}")
    merge([(RO + 4 * w, RM + 2 * w, RM + 2 * w + 1) for w in range(1, 8)])
    A("  s_cmp_eq_u32 s69, 0")
    A("  s_cbranch_scc0 L_comb")
    for r in range(EO, EL + 1):
        A(f"  v_min_u32 v{r}, -2, v{r}")
    A(f"  buffer_store_dwordx4 v[{EO}:{EO+3}], v{X4}, {sWS}, s83 offen sc1")
    A("  s_mov_b64 exec, 0x10001")
    A(f"  buffer_store_dwordx2 v[{EM}:{EL}], v{X5}, {sWS}, s83 offen offset:1024 sc1")
    A("  s_endpgm")
    A("L_repoll:")
    A("  s_add_u32 s69, s69, 1")
    A("  s_cmp_gt_u32 s69, 0x100000")
    A("  s_cbranch_scc1 L_main_end")
    poll()
    A("L_comb:")
    A("  s_waitcnt vmcnt(0)")
    regs = [KB + 8 * (j - 1) + i for j in range(1, 16) for i in range(6)]
    A(f"  v_max3_u32 v{X0}, v{regs[0]}, v{regs[1]}, v{regs[2]}")
    A(f"  v_max3_u32 v{X1}, v{regs[3]}, v{regs[4]}, v{regs[5]}")
    k = 6
    while k < len(regs):
        A(f"  v_max3_u32 v{X0}, v{X0}, v{regs[k]}, v{regs[k+1]}")
        A(f"  v_max3_u32 v{X1}, v{X1}, v{regs[k+2]}, v{regs[k+3]}")
        k += 4
    A(f"  v_max_u32 v{X0}, v{X0}, v{X1}")
    A(f"  v_cmp_eq_u32 vcc, -1, v{X0}")
    A("  s_cbranch_vccnz L_repoll")
    merge([(KB + 8 * (j - 1), KB + 8 * (j - 1) + 4, KB + 8 * (j - 1) + 5) for j in range(1, 16)])
    A(f"  v_rcp_f32 v{X1}, v{EL}")
    A(f"  v_bfe_u32 v{X2}, v0, 4, 1                ; head")
    A(f"  v_lshrrev_b32 v{X3}, 5, v0               ; half")
    A(f"  v_and_b32 v{X4}, 15, v0")
    A(f"  v_fma_f32 v{X0}, -v{EL}, v{X1}, 1.0")
    A(f"  v_fma_f32 v{X1}, v{X0}, v{X1}, v{X1}")
    A(f"  v_lshlrev_b32 v{X2}, 8, v{X2}")
    A(f"  v_lshl_add_u32 v{X2}, v{X3}, 7, v{X2}")
    A(f"  v_lshl_add_u32 v{X2}, v{X4}, 3, v{X2}")
    for c in range(4):
        A(f"  v_mul_f32 v{EO+c}, v{EO+c}, v{X1}")
    A(f"  v_cvt_pk_bf16_f32 v{EO}, v{EO}, v{EO+1}")
    A(f"  v_cvt_pk_bf16_f32 v{EO+1}, v{EO+2}, v{EO+3}")
    A("  s_lshl_b32 s70, s26, 9")
    A(f"  buffer_store_dwordx2 v[{EO}:{EO+1}], v{X2}, s[92:95], s70 offen")
    A("L_main_end:")
    A("  s_endpgm")

    A('.section .rodata,"a"')
    for name, nv, ns in ((main, 256, 96),):
        A(".p2align 6")
        A(f".amdhsa_kernel {name}")
        A(f"  .amdhsa_next_free_vgpr {nv}")
        A(f"  .amdhsa_next_free_sgpr {ns}")
        A(f"  .amdhsa_accum_offset {nv}")
        A("  .amdhsa_group_segment_fixed_size 0")
        A("  .amdhsa_kernarg_size 80")
        A("  .amdhsa_user_sgpr_count 2")
        A("  .amdhsa_user_sgpr_kernarg_segment_ptr 1")
        A("  .amdhsa_system_sgpr_workgroup_id_x 1")
        A("  .amdhsa_float_denorm_mode_32 3")
        A(".end_amdhsa_kernel")
    return "\n".join(L) + "\n"


if __name__ == "__main__":
    out = sys.argv[1] if len(sys.argv) > 1 else f"cdna_kernels/{BASE}.s"
    kw = {}
    for a in sys.argv[2:]:
        k, v = a.split("=")
        kw[k] = int(v) if v.lstrip("-").isdigit() else v
    open(out, "w").write(gen(**kw))
    print("wrote", out, kw)
```

```python
import sys

BASE = "standalone__kv_cache_quant_int4_int2_kv_with_per_channel_or_per_token_scales__decode"
HEADER = """; Kernarg layout for this problem (80 bytes, ptrs only, base s[0:1]):
"""

LOG2E = 0x3fb8aa3b
SCALE = 0x3db504f3


def gen(G=8, P=11, flags="nt", sflags="nt", ts=0, hs=1, T1=8, T2=4, nobar=0):
    L = []
    A = L.append
    nwg, wpb = 256, 8
    CNT_OFF = 4 << 20
    TS_OFF = 5 << 20
    WS_BYTES = 6 << 20
    lgG = G.bit_length() - 1
    NU = 16 * G
    assert G in (4, 8) and 6 <= P <= 15
    LDS_SLOT = 16384
    D1 = NU - P * G - T1 - T2
    assert D1 >= 0
    TK_OFF = 128
    main = BASE + "_kernel"
    A(HEADER.rstrip())
    A(f"; @launch grid=({nwg},1,1) block=({wpb*64},1,1) lds={LDS_SLOT+64}")
    A('.amdgcn_target "amdgcn-amd-amdhsa--gfx950"')
    A(".text")

    vK, vV, vS = 1, 2, 3
    QB = 4
    KZ = 8
    KS = 16
    SR = 24
    ZR = 28
    VZ = 32
    T = 48
    U = 52
    AK = 60
    D = 64
    TT = 72
    BV = 60
    PA = 80
    ACC = 84
    MR, LS = 116, 117
    X0, X1, X2, X3, X4, X5 = 118, 119, 120, 121, 122, 123
    vAT, vCN, vFL, vTK = 124, 125, 126, 127
    KB = 128
    VB = 192

    def vz(j):
        return VZ + 2 * j
    def vs(j):
        return VZ + 2 * j + 1

    A(f".globl {main}")
    A(".p2align 8")
    A(f".type {main},@function")
    A(f"{main}:")
    A(f"  s_cmp_ge_u32 s2, {nwg}")
    A("  s_cbranch_scc1 L_main_end")
    if ts:
        A("  s_memrealtime s[84:85]")
    A("  s_load_dwordx8 s[4:11], s[0:1], 0")
    A("  s_load_dwordx4 s[12:15], s[0:1], 32")
    A("  s_load_dwordx2 s[16:17], s[0:1], 48    ; vz")
    A("  s_load_dwordx4 s[20:23], s[0:1], 64")
    A("  s_load_dwordx2 s[90:91], s[0:1], 56    ; out")
    A("  v_lshrrev_b32 v4, 6, v0")
    A("  v_and_b32 v0, 63, v0                    ; lane")
    A("  v_readfirstlane_b32 s3, v4")
    A(f"  s_lshr_b32 s24, s2, {lgG}                ; pool")
    A(f"  s_and_b32 s25, s2, {G-1}")
    A("  s_lshr_b32 s26, s2, 4")
    A(f"  s_and_b32 s27, s2, {15 & ~(G-1)}")
    A("  s_lshl_b32 s27, s27, 7")
    A("  s_add_u32 s27, s27, s3")
    A("  s_lshl_b32 s83, s2, 11")
    A(f"  s_mul_i32 s69, s26, {hs}")
    A("  s_lshl_b32 s18, s26, 25")
    A("  s_lshl_b32 s19, s26, 17")
    A("  v_lshrrev_b32 v4, 4, v0                 ; g")
    A("  v_bfe_u32 v5, v0, 2, 2                  ; a")
    A("  v_and_b32 v6, 3, v0                     ; r")
    A("  v_and_b32 v7, 15, v0                    ; n")
    A("  v_lshlrev_b32 v1, 12, v5")
    A("  v_lshl_add_u32 v1, v4, 6, v1")
    A("  v_lshl_add_u32 v1, v6, 4, v1            ; voffK")
    A("  v_lshlrev_b32 v2, 12, v4")
    A("  v_lshl_add_u32 v2, v7, 4, v2            ; voffV")
    A("  v_lshlrev_b32 v3, 4, v4                 ; voffS")
    A("  v_bfe_u32 v8, v0, 2, 1                  ; h")
    A("  v_lshlrev_b32 v9, 5, v4                 ; 32g")
    A("  v_lshl_add_u32 v9, v6, 3, v9            ; 32g + 8r")
    A("  s_lshl_b32 s28, s26, 9                  ; kvh*512")
    A("  v_lshl_add_u32 v10, v8, 8, v9")
    A("  v_add_u32 v10, s28, v10                 ; q offset")
    A("  s_lshr_b32 s28, s2, 3")
    A("  s_lshl_b32 s28, s28, 8")
    A("  v_add_u32 v11, s28, v9")
    A("  s_lshl_b32 s28, s24, 8")
    A(f"  s_add_u32 s28, s28, {CNT_OFF}")
    A(f"  v_mov_b32 v{vCN}, s28")
    A(f"  v_mov_b32 v{vFL}, s24")
    A(f"  v_mov_b32 v{vAT}, 0")

    def setitem(su, dK, dS):
        A(f"  s_lshr_b32 s{dK}, s{su}, {lgG}")
        A(f"  s_add_u32 s{dK}, s{dK}, s69")
        A(f"  s_and_b32 s{dK}, s{dK}, 15")
        A(f"  s_lshl_b32 s{dK}, s{dK}, 3")
        A(f"  s_and_b32 s{dS}, s{su}, {G-1}")
        A(f"  s_lshl_b32 s{dS}, s{dS}, 7")
        A(f"  s_add_u32 s{dK}, s{dK}, s{dS}")
        A(f"  s_add_u32 s{dK}, s{dK}, s27")
        A(f"  s_lshl_b32 s{dS}, s{dK}, 6")
        A(f"  s_lshl_b32 s{dK}, s{dK}, 14")
    setitem(25, 72, 73)
    A("  s_cmp_eq_u32 s25, 0")
    A("  s_cselect_b32 s74, 1, 0")
    A("  s_cmp_eq_u32 s3, 0")
    A("  s_cselect_b32 s80, 1, 0                 ; wave 0")
    A("  s_and_b32 s81, s74, s80")
    A("  s_waitcnt lgkmcnt(0)")
    if ts == 3:
        A("  s_memrealtime s[86:87]")
    def srd(d, lo, hi, off, nrec):
        if off is None:
            A(f"  s_mov_b32 s{d}, s{lo}")
            A(f"  s_mov_b32 s{d+1}, s{hi}")
        else:
            A(f"  s_add_u32 s{d}, s{lo}, s{off}")
            A(f"  s_addc_u32 s{d+1}, s{hi}, 0")
        A(f"  s_mov_b32 s{d+2}, {nrec}")
        A(f"  s_mov_b32 s{d+3}, 0x00020000")
    sQ, sK, sV, sKS, sKZ, sVS, sVZ, sWS, sDB = ("s[32:35]", "s[36:39]", "s[40:43]", "s[44:47]", "s[48:51]", "s[52:55]", "s[56:59]", "s[60:63]", "s[76:79]")
    srd(32, 4, 5, None, 8192)
    srd(44, 10, 11, None, 8192)
    srd(48, 12, 13, None, 8192)
    srd(36, 6, 7, 18, 1 << 25)
    c0 = 48
    A(f"  buffer_load_dwordx2 v[{QB}:{QB+1}], v10, {sQ}, 0 offen")
    A(f"  buffer_load_dwordx2 v[{QB+2}:{QB+3}], v10, {sQ}, 0 offen offset:128")
    A(f"  buffer_load_dwordx2 v[{c0}:{c0+1}], v11, {sKZ}, 0 offen")
    A(f"  buffer_load_dwordx2 v[{c0+2}:{c0+3}], v11, {sKZ}, 0 offen offset:128")
    A(f"  buffer_load_dwordx2 v[{c0+4}:{c0+5}], v11, {sKS}, 0 offen")
    A(f"  buffer_load_dwordx2 v[{c0+6}:{c0+7}], v11, {sKS}, 0 offen offset:128")

    def kload(m, u, so):
        r = KB + (2 * m + u) * 4
        A(f"  buffer_load_dwordx4 v[{r}:{r+3}], v{vK}, {sK}, s{so} offen offset:{m*512+u*256} {flags}")
    def vload(half, j):
        r = VB + (half * 8 + j) * 4
        A(f"  buffer_load_dwordx4 v[{r}:{r+3}], v{vV}, {sV}, s72 offen offset:{j*512+half*256} {flags}")
    def sload():
        A(f"  buffer_load_dwordx4 v[{SR}:{SR+3}], v{vS}, {sVS}, s73 offen {sflags}")
        A(f"  buffer_load_dwordx4 v[{ZR}:{ZR+3}], v{vS}, {sVZ}, s73 offen {sflags}")
    for m in range(8):
        kload(m, 0, 72); kload(m, 1, 72)
    srd(40, 8, 9, 18, 1 << 25)
    srd(52, 14, 15, 19, 1 << 17)
    srd(56, 16, 17, 19, 1 << 17)
    srd(60, 22, 23, None, WS_BYTES)
    srd(76, 20, 21, None, 256)
    srd(92, 90, 91, None, 8192)
    A("  s_cmp_eq_u32 s81, 0")
    A("  s_cbranch_scc1 L_noinit")
    A("  s_mov_b64 exec, 1")
    A(f"  buffer_store_dword v{vAT}, v{vCN}, {sWS}, 0 offen sc1   ; counter = 0")
    A("  s_mov_b64 exec, -1")
    A("L_noinit:")
    for i in range(32):
        A(f"  v_mov_b32 v{ACC+i}, 0")
    A(f"  v_mov_b32 v{MR}, 0xff800000")
    A(f"  v_mov_b32 v{LS}, 0")
    A("  s_mov_b32 s64, 0xffff0000")
    A("  s_mov_b32 s65, 0xffff0000")
    A(f"  s_mov_b32 s66, 0x{LOG2E:08x}")
    A(f"  s_mov_b32 s67, 0x{SCALE:08x}")
    A("  s_mov_b32 s68, 0xffff0000")
    A("  s_mov_b32 s28, s25                      ; item")
    A("  s_mov_b32 s29, 0")
    A(f"  s_mov_b32 s31, {LDS_SLOT}")
    A("  s_mov_b32 s89, 0")
    A("  s_mov_b32 s30, 1")
    A("  s_lshr_b32 s82, s3, 1")
    A("  s_lshl_b32 s82, 1, s82")
    if ts == 3:
        A("  s_waitcnt lgkmcnt(0)")
        A("  s_sub_u32 s89, s86, s84")
    A("  s_waitcnt vmcnt(16)")
    if ts == 4:
        A("  s_memrealtime s[86:87]")
        A("  s_waitcnt lgkmcnt(0)")
        A("  s_sub_u32 s89, s86, s84")
    if ts == 5:
        A("  s_waitcnt vmcnt(0)")
        A("  s_memrealtime s[86:87]")
        A("  s_waitcnt lgkmcnt(0)")
        A("  s_sub_u32 s89, s86, s84")
    for i in range(4):
        A(f"  v_lshlrev_b32 v{KZ+2*i}, 16, v{c0+i}")
        A(f"  v_and_b32 v{KZ+2*i+1}, s68, v{c0+i}")
        A(f"  v_and_b32 v{KS+2*i}, 0xffff, v{c0+4+i}")
        A(f"  v_and_b32 v{KS+2*i+1}, s68, v{c0+4+i}")

    def dppsum_parts(m):
        d = D + 4 * (m % 2)
        t = TT + m
        g0 = [f"  v_mov_b32_dpp v{X4}, v{d} quad_perm:[0,0,0,0] row_mask:0xf bank_mask:0xf",
              f"  v_mov_b32_dpp v{X5}, v{d+2} quad_perm:[2,2,2,2] row_mask:0xf bank_mask:0xf"]
        g1 = [f"  v_add_f32_dpp v{X4}, v{d+1}, v{X4} quad_perm:[1,1,1,1] row_mask:0xf bank_mask:0xf",
              f"  v_add_f32_dpp v{X5}, v{d+3}, v{X5} quad_perm:[3,3,3,3] row_mask:0xf bank_mask:0xf"]
        g2 = [f"  v_add_f32 v{t}, v{X4}, v{X5}"]
        return g0, g1, g2

    A(".p2align 6")
    A("L_loop:")
    A("  s_cmp_eq_u32 s30, 0")
    A("  s_cbranch_scc1 L_idle")
    sload()
    for m in range(8):
        x = KB + m * 8
        A("  s_waitcnt vmcnt(16)")
        for i in range(8):
            A(f"  v_cvt_f32_i32 v{x+i}, v{x+i}")
        for i in range(4):
            A(f"  v_pk_add_f32 v[{x+2*i}:{x+2*i+1}], v[{x+2*i}:{x+2*i+1}], v[{KZ+2*i}:{KZ+2*i+1}] neg_lo:[0,1] neg_hi:[0,1]")
        for i in range(4):
            A(f"  v_cvt_pk_bf16_f32 v{T+i}, v{x+2*i}, v{x+2*i+1}")
        vload(m // 4, 2 * (m % 4)); vload(m // 4, 2 * (m % 4) + 1)
        g0, g1, g2 = dppsum_parts(m - 1) if m > 0 else ([], [], [])
        for x_ in g0: A(x_)
        for i in range(8):
            A(f"  v_dot2_f32_bf16 v{U+i}, v{T+i//2}, v{KS+i}, 0")
            if i == 1:
                for x_ in g1: A(x_)
            if i == 3:
                for x_ in g2: A(x_)
        for i in range(4):
            A(f"  v_cvt_pk_bf16_f32 v{AK+i}, v{U+2*i}, v{U+2*i+1}")
        A("  s_nop 1")
        d = D + 4 * (m % 2)
        A(f"  v_mfma_f32_16x16x32_bf16 v[{d}:{d+3}], v[{AK}:{AK+3}], v[{QB}:{QB+3}], 0")
    A("  s_waitcnt vmcnt(16)")
    for i in range(4):
        A(f"  v_lshlrev_b32 v{vz(2*i)}, 16, v{ZR+i}")
        A(f"  v_and_b32 v{vz(2*i+1)}, s68, v{ZR+i}")
        A(f"  v_and_b32 v{vs(2*i)}, 0xffff, v{SR+i}")
        A(f"  v_and_b32 v{vs(2*i+1)}, s68, v{SR+i}")
    g0, g1, g2 = dppsum_parts(7)
    for x_ in g0: A(x_)
    A("  s_nop 1")
    for x_ in g1: A(x_)
    for x_ in g2: A(x_)
    for i in range(4):
        A(f"  v_cvt_pk_bf16_f32 v{T+i}, v{TT+2*i}, v{TT+2*i+1}")
    for i in range(4):
        A(f"  v_lshlrev_b32 v{TT+2*i}, 16, v{T+i}")
        A(f"  v_and_b32 v{TT+2*i+1}, s68, v{T+i}")
    for i in range(8):
        A(f"  v_mul_f32 v{TT+i}, s67, v{TT+i}")
    for i in range(4):
        A(f"  v_cvt_pk_bf16_f32 v{T+i}, v{TT+2*i}, v{TT+2*i+1}")
    for i in range(4):
        A(f"  v_lshlrev_b32 v{TT+2*i}, 16, v{T+i}")
        A(f"  v_and_b32 v{TT+2*i+1}, s68, v{T+i}")
    A(f"  v_max3_f32 v{X0}, v{TT}, v{TT+1}, v{TT+2}")
    A(f"  v_max3_f32 v{X1}, v{TT+3}, v{TT+4}, v{TT+5}")
    A(f"  v_max3_f32 v{X0}, v{TT+6}, v{TT+7}, v{X0}")
    A(f"  v_max_f32 v{X0}, v{X0}, v{X1}")
    A(f"  v_mov_b32 v{X1}, v{X0}")
    A("  s_nop 1")
    A(f"  v_permlane16_swap_b32 v{X0}, v{X1}")
    A(f"  v_max_f32 v{X0}, v{X0}, v{X1}")
    A(f"  v_mov_b32 v{X1}, v{X0}")
    A("  s_nop 1")
    A(f"  v_permlane32_swap_b32 v{X0}, v{X1}")
    A(f"  v_max_f32 v{X0}, v{X0}, v{X1}")
    A(f"  v_cmp_gt_f32 vcc, v{X0}, v{MR}")
    A("  s_cbranch_vccz L_norescale")
    A(f"  v_max_f32 v{X0}, v{X0}, v{MR}")
    A(f"  v_sub_f32 v{X1}, v{MR}, v{X0}")
    A(f"  v_mul_f32 v{X1}, s66, v{X1}")
    A(f"  v_exp_f32 v{X1}, v{X1}")
    A(f"  v_mov_b32 v{MR}, v{X0}")
    A("  s_nop 0")
    A(f"  v_mul_f32 v{LS}, v{LS}, v{X1}")
    A(f"  v_readlane_b32 s70, v{X1}, 0")
    A(f"  v_readlane_b32 s71, v{X1}, 4")
    A("  s_nop 1")
    A(f"  v_mov_b32 v{X2}, s70")
    A(f"  v_mov_b32 v{X3}, s71")
    A(f"  v_cndmask_b32 v{X2}, v{X2}, v{X3}, s[64:65]")
    for i in range(32):
        A(f"  v_mul_f32 v{ACC+i}, v{ACC+i}, v{X2}")
    A("L_norescale:")
    for i in range(8):
        A(f"  v_sub_f32 v{TT+i}, v{TT+i}, v{MR}")
    for i in range(8):
        A(f"  v_mul_f32 v{TT+i}, s66, v{TT+i}")
    for i in range(8):
        A(f"  v_exp_f32 v{TT+i}, v{TT+i}")
    A("  s_nop 0")
    for i in range(4):
        A(f"  v_cvt_pk_bf16_f32 v{PA+i}, v{TT+2*i}, v{TT+2*i+1}")
    A(f"  v_add_f32 v{X0}, v{TT}, v{TT+1}")
    A(f"  v_add_f32 v{X1}, v{TT+2}, v{TT+3}")
    A(f"  v_add_f32 v{X2}, v{TT+4}, v{TT+5}")
    A(f"  v_add_f32 v{X3}, v{TT+6}, v{TT+7}")
    A(f"  v_add_f32 v{X0}, v{X0}, v{X1}")
    A(f"  v_add_f32 v{X2}, v{X2}, v{X3}")
    A(f"  v_add_f32 v{X0}, v{X0}, v{X2}")
    A(f"  v_add_f32 v{LS}, v{LS}, v{X0}")
    A(f"  s_cmp_lt_u32 s29, {P-1}")
    A("  s_cbranch_scc0 L_dyn")
    A(f"  s_add_u32 s28, s28, {G}")
    A("  s_mov_b32 s75, 1")
    if not nobar:
        A("  s_barrier")
    A("  s_cmp_eq_u32 s80, 0")
    A("  s_cbranch_scc1 L_next")
    A("  s_cmp_eq_u32 s29, 0")
    A("  s_cbranch_scc0 L_s1")
    for i in range(4):
        A(f"  v_mov_b32 v{X0+i}, -1")
    A(f"  v_lshlrev_b32 v{X4}, 4, v0")
    A(f"  v_lshrrev_b32 v{X5}, 1, v0")
    A(f"  buffer_store_dwordx4 v[{X0}:{X0+3}], v{X4}, {sWS}, s83 offen sc1")
    A("  s_mov_b64 exec, 0x10001")
    A(f"  buffer_store_dwordx2 v[{X0}:{X0+1}], v{X5}, {sWS}, s83 offen offset:1024 sc1")
    A("  s_mov_b64 exec, -1")
    A("  s_cmp_eq_u32 s81, 0")
    A("  s_cbranch_scc1 L_next")
    A(f"  v_mov_b32 v{vAT}, 1")
    A("  s_mov_b64 exec, 1")
    A(f"  buffer_store_byte v{vAT}, v{vFL}, {sDB}, 0 offen sc1")
    A("  s_mov_b64 exec, -1")
    A("  s_branch L_next")
    A("L_s1:")
    A("  s_cmp_eq_u32 s29, 2")
    A("  s_cbranch_scc0 L_s2")
    A("  s_lshl_b32 s70, s26, 2")
    A(f"  s_add_u32 s70, s70, {TK_OFF}")
    A(f"  v_mov_b32 v{X0}, s70")
    A(f"  v_mov_b32 v{vTK}, 1")
    A("  s_mov_b64 exec, 1")
    A(f"  buffer_atomic_add v{vTK}, v{X0}, {sDB}, 0 offen sc0 sc1   ; ticket")
    A("  s_mov_b64 exec, -1")
    A("  s_branch L_next")
    A("L_s2:")
    A(f"  s_cmp_eq_u32 s29, {P-3}")
    A("  s_cbranch_scc0 L_s3")
    A("  s_mov_b64 exec, 1")
    A(f"  buffer_load_ubyte v{vAT}, v{vFL}, {sDB}, 0 offen sc1")
    A("  s_mov_b64 exec, -1")
    A("  s_branch L_next")
    A("L_s3:")
    A(f"  s_cmp_eq_u32 s29, {P-2}")
    A("  s_cbranch_scc0 L_next")
    A(f"  v_readfirstlane_b32 s70, v{vAT}")
    A("  s_or_b32 s74, s74, s70")
    A("  s_branch L_claim")
    A("L_dyn:")
    if ts == 1:
        A("  s_cmp_lg_u32 s89, 0")
        A("  s_cbranch_scc1 L_tsd")
        A("  s_memrealtime s[86:87]")
        A("  s_waitcnt lgkmcnt(0)")
        A("  s_sub_u32 s89, s86, s84")
        A("L_tsd:")
    A("  s_cmp_eq_u32 s80, 0")
    A("  s_cbranch_scc1 L_sync")
    A(f"  v_readfirstlane_b32 s70, v{vAT}")
    A(f"  s_add_u32 s71, s70, {P*G}")
    A("  s_lshl_b32 s71, s71, 4")
    A("  s_or_b32 s71, s71, 15")
    A(f"  s_cmp_lt_u32 s70, {D1}")
    A("  s_cbranch_scc1 L_enc")
    A(f"  s_sub_u32 s70, s70, {D1}")
    A("  s_lshr_b32 s71, s70, 1")
    A(f"  s_add_u32 s71, s71, {P*G+D1}")
    A("  s_lshl_b32 s71, s71, 4")
    A("  s_and_b32 s75, s70, 1")
    A("  s_lshl_b32 s75, s75, 1")
    A("  s_lshl_b32 s75, 3, s75")
    A("  s_or_b32 s71, s71, s75")
    A(f"  s_cmp_lt_u32 s70, {2*T1}")
    A("  s_cbranch_scc1 L_enc")
    A(f"  s_sub_u32 s70, s70, {2*T1}")
    A(f"  s_min_u32 s70, s70, {4*T2}")
    A("  s_lshr_b32 s71, s70, 2")
    A(f"  s_add_u32 s71, s71, {P*G+D1+T1}")
    A("  s_lshl_b32 s71, s71, 4")
    A("  s_and_b32 s75, s70, 3")
    A("  s_lshl_b32 s75, 1, s75")
    A("  s_or_b32 s71, s71, s75")
    A("L_enc:")
    A("  s_cmp_eq_u32 s74, 0")
    A(f"  s_cselect_b32 s70, {NU << 4}, s71")
    A(f"  v_mov_b32 v{X0}, s70")
    A(f"  v_mov_b32 v{X1}, s31")
    A(f"  ds_write_b32 v{X1}, v{X0}")
    A("  s_waitcnt lgkmcnt(0)")
    A("L_sync:")
    A("  s_barrier")
    A(f"  v_mov_b32 v{X1}, s31")
    A(f"  ds_read_b32 v{X1}, v{X1}")
    A("  s_xor_b32 s31, s31, 4")
    A("  s_waitcnt lgkmcnt(0)")
    A(f"  v_readfirstlane_b32 s28, v{X1}")
    A("  s_and_b32 s75, s28, s82")
    A("  s_lshr_b32 s28, s28, 4")
    A(f"  s_cmp_lt_u32 s28, {NU}")
    A("  s_cbranch_scc1 L_more")
    A("  s_mov_b32 s75, 0")
    if ts == 2:
        A("  s_memrealtime s[86:87]")
        A("  s_waitcnt lgkmcnt(0)")
        A("  s_sub_u32 s89, s86, s84")
    A("  s_branch L_next")
    A("L_more:")
    A("  s_cmp_eq_u32 s80, 0")
    A("  s_cbranch_scc1 L_next")
    A("L_claim:")
    A("  s_cmp_eq_u32 s74, 0")
    A("  s_cbranch_scc1 L_next")
    A(f"  v_mov_b32 v{vAT}, 1")
    A("  s_mov_b64 exec, 1")
    A(f"  buffer_atomic_add v{vAT}, v{vCN}, {sWS}, 0 offen sc0 sc1")
    A("  s_mov_b64 exec, -1")
    A("L_next:")
    setitem(28, 70, 71)
    A("  s_cmp_eq_u32 s75, 0")
    A(f"  s_cselect_b32 s38, 0, {1 << 25}")
    A("  s_cselect_b32 s70, 0, s70")
    A("  s_cmp_eq_u32 s30, 0")
    A("  s_cbranch_scc1 L_konly")
    A("L_vphase:")
    for half in range(2):
        for jp in range(4):
            j = 2 * jp
            x = VB + (half * 8 + j) * 4
            y = x + 4
            A("  s_waitcnt vmcnt(14)")
            for i in range(8):
                A(f"  v_cvt_f32_i32 v{x+i}, v{x+i}")
            for (b, z) in ((x, vz(j)), (y, vz(j + 1))):
                for i in range(2):
                    A(f"  v_pk_add_f32 v[{b+2*i}:{b+2*i+1}], v[{b+2*i}:{b+2*i+1}], v[{z}:{z+1}] op_sel_hi:[1,0] neg_lo:[0,1] neg_hi:[0,1]")
            for c in range(4):
                A(f"  v_cvt_pk_bf16_f32 v{T+c}, v{x+c}, v{y+c}")
            kload(half * 4 + jp, 0, 70); kload(half * 4 + jp, 1, 70)
            for c in range(4):
                A(f"  v_dot2_f32_bf16 v{U+2*c}, v{T+c}, v{vs(j)}, 0")
                A(f"  v_dot2_f32_bf16 v{U+2*c+1}, v{T+c}, v{vs(j+1)}, 0")
            for c in range(4):
                A(f"  v_cvt_pk_bf16_f32 v{BV+4*c+jp}, v{U+2*c}, v{U+2*c+1}")
        A("  s_nop 1")
        for c in range(4):
            a = ACC + (half * 4 + c) * 4
            A(f"  v_mfma_f32_16x16x32_bf16 v[{a}:{a+3}], v[{PA}:{PA+3}], v[{BV+4*c}:{BV+4*c+3}], v[{a}:{a+3}]")
    A("L_step:")
    A("  s_mov_b32 s72, s70")
    A("  s_mov_b32 s73, s71")
    A("  s_mov_b32 s30, s75")
    A("  s_add_u32 s29, s29, 1")
    A(f"  s_cmp_lt_u32 s28, {NU}")
    A("  s_cbranch_scc1 L_loop")
    A("  s_branch L_epi")
    A("L_idle:")
    A("  s_waitcnt vmcnt(0)")
    A("  s_branch L_dyn")
    A("L_konly:")
    A("  s_cmp_eq_u32 s75, 0")
    A("  s_cbranch_scc1 L_step")
    for m in range(8):
        kload(m, 0, 70); kload(m, 1, 70)
    A("  s_branch L_step")
    A("L_epi:")

    EO, EM, EL = 52, 56, 57
    vLD = vCN
    A(f"  v_mov_b32 v{X1}, v{LS}")
    A("  s_nop 1")
    A(f"  v_permlane16_swap_b32 v{LS}, v{X1}")
    A(f"  v_add_f32 v{LS}, v{LS}, v{X1}")
    A(f"  v_mov_b32 v{X1}, v{LS}")
    A("  s_nop 1")
    A(f"  v_permlane32_swap_b32 v{LS}, v{X1}")
    A(f"  v_add_f32 v{LS}, v{LS}, v{X1}")
    A(f"  v_readfirstlane_b32 s69, v{vTK}")
    A(f"  v_readlane_b32 s70, v{MR}, 0")
    A(f"  v_readlane_b32 s71, v{MR}, 4")
    A(f"  v_readlane_b32 s72, v{LS}, 0")
    A(f"  v_readlane_b32 s73, v{LS}, 4")
    A(f"  v_lshlrev_b32 v{X4}, 4, v0               ; lane*16")
    A(f"  v_lshrrev_b32 v{X5}, 1, v0")
    A(f"  v_and_b32 v{X5}, 8, v{X5}")
    A("  s_cmp_eq_u32 s69, 15")
    A("  s_cselect_b32 s69, s80, 0")
    for j in range(1, 16):
        A(f"  s_xor_b32 s{3+j}, s83, {j << 11}")
    def poll():
        for j in range(1, 16):
            r = KB + 8 * (j - 1)
            A(f"  buffer_load_dwordx4 v[{r}:{r+3}], v{X4}, {sWS}, s{3+j} offen sc1")
            A(f"  buffer_load_dwordx2 v[{r+4}:{r+5}], v{X5}, {sWS}, s{3+j} offen offset:1024 sc1")
    A("  s_cmp_eq_u32 s69, 0")
    A("  s_cbranch_scc1 L_nopoll")
    A("  s_waitcnt vmcnt(0)")
    poll()
    A("L_nopoll:")
    A(f"  v_mov_b32 v{X0}, s70")
    A(f"  v_mov_b32 v{X1}, s71")
    A(f"  v_mov_b32 v{X2}, s72")
    A(f"  v_mov_b32 v{X3}, s73")
    A(f"  v_cndmask_b32 v{EM}, v{X0}, v{X1}, s[64:65]")
    A(f"  v_cndmask_b32 v{EL}, v{X2}, v{X3}, s[64:65]")
    A("  s_mov_b32 s74, 0")
    A("  s_mov_b32 s75, -1                       ; lanes 32..63")
    A("  s_lshl_b32 s70, s3, 11")
    A(f"  v_add_u32 v{vLD}, s70, v{X4}")
    A(f"  v_lshl_add_u32 v{X0}, v0, 3, s70")
    A("  s_nop 4")
    for c in range(4):
        A(f"  v_cndmask_b32 v{EO+c}, v{ACC+c*4}, v{ACC+16+c*4}, s[74:75]")
    A(f"  ds_write_b128 v{vLD}, v[{EO}:{EO+3}]")
    A(f"  ds_write_b64 v{X0}, v[{EM}:{EL}] offset:1024")
    if ts:
        A("  s_memrealtime s[86:87]")
        A("  s_getreg_b32 s88, hwreg(HW_REG_XCC_ID)")
        A(f"  s_lshl_b32 s70, s2, 3")
        A("  s_add_u32 s70, s70, s3")
        A("  s_lshl_b32 s70, s70, 4")
        A(f"  s_add_u32 s70, s70, {TS_OFF}")
        A("  s_lshl_b32 s89, s89, 8")
        A("  s_or_b32 s88, s88, s89")
        A("  s_sub_u32 s82, s29, 1")
        A("  s_waitcnt lgkmcnt(0)")
        A("  v_mov_b32 v8, s84"); A("  v_mov_b32 v9, s86"); A("  v_mov_b32 v10, s88"); A("  v_mov_b32 v11, s82")
        A("  v_mov_b32 v12, s70")
        A("  s_mov_b64 exec, 1")
        A(f"  buffer_store_dwordx4 v[8:11], v12, {sWS}, 0 offen")
        A("  s_mov_b64 exec, -1")
    A("  s_waitcnt lgkmcnt(0)")
    A("  s_barrier")
    A("  s_cmp_eq_u32 s80, 0")
    A("  s_cbranch_scc1 L_main_end")
    RO, RM = ACC, VZ
    for w in range(1, 8):
        A(f"  ds_read_b128 v[{RO+4*w}:{RO+4*w+3}], v{vLD} offset:{2048*w}")
        A(f"  ds_read_b64 v[{RM+2*w}:{RM+2*w+1}], v{X0} offset:{2048*w+1024}")
    A("  s_waitcnt lgkmcnt(0)")

    def merge(items):
        ms = [m for _, m, _ in items]
        A(f"  v_max3_f32 v{X0}, v{EM}, v{ms[0]}, v{ms[1]}")
        k = 2
        while k < len(ms):
            if k + 1 < len(ms):
                A(f"  v_max3_f32 v{X0}, v{X0}, v{ms[k]}, v{ms[k+1]}"); k += 2
            else:
                A(f"  v_max_f32 v{X0}, v{X0}, v{ms[k]}"); k += 1
        for m in [EM] + ms:
            A(f"  v_sub_f32 v{m}, v{m}, v{X0}")
        for m in [EM] + ms:
            A(f"  v_mul_f32 v{m}, s66, v{m}")
        for m in [EM] + ms:
            A(f"  v_exp_f32 v{m}, v{m}")
        A("  s_nop 0")
        for c in range(4):
            A(f"  v_mul_f32 v{EO+c}, v{EO+c}, v{EM}")
        A(f"  v_mul_f32 v{EL}, v{EL}, v{EM}")
        for o, m, l in items:
            for c in range(4):
                A(f"  v_fmac_f32 v{EO+c}, v{o+c}, v{m}")
            A(f"  v_fmac_f32 v{EL}, v{l}, v{m}")
        A(f"  v_mov_b32 v{EM}, v{X0}")
    merge([(RO + 4 * w, RM + 2 * w, RM + 2 * w + 1) for w in range(1, 8)])
    A("  s_cmp_eq_u32 s69, 0")
    A("  s_cbranch_scc0 L_comb")
    for r in range(EO, EL + 1):
        A(f"  v_min_u32 v{r}, -2, v{r}")
    A(f"  buffer_store_dwordx4 v[{EO}:{EO+3}], v{X4}, {sWS}, s83 offen sc1")
    A("  s_mov_b64 exec, 0x10001")
    A(f"  buffer_store_dwordx2 v[{EM}:{EL}], v{X5}, {sWS}, s83 offen offset:1024 sc1")
    A("  s_endpgm")
    A("L_repoll:")
    A("  s_add_u32 s69, s69, 1")
    A("  s_cmp_gt_u32 s69, 0x100000")
    A("  s_cbranch_scc1 L_main_end")
    poll()
    A("L_comb:")
    A("  s_waitcnt vmcnt(0)")
    regs = [KB + 8 * (j - 1) + i for j in range(1, 16) for i in range(6)]
    A(f"  v_max3_u32 v{X0}, v{regs[0]}, v{regs[1]}, v{regs[2]}")
    A(f"  v_max3_u32 v{X1}, v{regs[3]}, v{regs[4]}, v{regs[5]}")
    k = 6
    while k < len(regs):
        A(f"  v_max3_u32 v{X0}, v{X0}, v{regs[k]}, v{regs[k+1]}")
        A(f"  v_max3_u32 v{X1}, v{X1}, v{regs[k+2]}, v{regs[k+3]}")
        k += 4
    A(f"  v_max_u32 v{X0}, v{X0}, v{X1}")
    A(f"  v_cmp_eq_u32 vcc, -1, v{X0}")
    A("  s_cbranch_vccnz L_repoll")
    merge([(KB + 8 * (j - 1), KB + 8 * (j - 1) + 4, KB + 8 * (j - 1) + 5) for j in range(1, 16)])
    A(f"  v_rcp_f32 v{X1}, v{EL}")
    A(f"  v_bfe_u32 v{X2}, v0, 4, 1                ; head")
    A(f"  v_lshrrev_b32 v{X3}, 5, v0               ; half")
    A(f"  v_and_b32 v{X4}, 15, v0")
    A(f"  v_fma_f32 v{X0}, -v{EL}, v{X1}, 1.0")
    A(f"  v_fma_f32 v{X1}, v{X0}, v{X1}, v{X1}")
    A(f"  v_lshlrev_b32 v{X2}, 8, v{X2}")
    A(f"  v_lshl_add_u32 v{X2}, v{X3}, 7, v{X2}")
    A(f"  v_lshl_add_u32 v{X2}, v{X4}, 3, v{X2}")
    for c in range(4):
        A(f"  v_mul_f32 v{EO+c}, v{EO+c}, v{X1}")
    A(f"  v_cvt_pk_bf16_f32 v{EO}, v{EO}, v{EO+1}")
    A(f"  v_cvt_pk_bf16_f32 v{EO+1}, v{EO+2}, v{EO+3}")
    A("  s_lshl_b32 s70, s26, 9")
    A(f"  buffer_store_dwordx2 v[{EO}:{EO+1}], v{X2}, s[92:95], s70 offen")
    if ts:
        A("  s_memrealtime s[86:87]")
        A("  s_lshl_b32 s70, s26, 3")
        A(f"  s_add_u32 s70, s70, {TS_OFF + 2048*16}")
        A("  s_waitcnt lgkmcnt(0)")
        A("  v_mov_b32 v8, s86"); A("  v_mov_b32 v9, s69")
        A("  v_mov_b32 v12, s70")
        A("  s_mov_b64 exec, 1")
        A(f"  buffer_store_dwordx2 v[8:9], v12, {sWS}, 0 offen")
    A("L_main_end:")
    A("  s_endpgm")

    A('.section .rodata,"a"')
    A(".p2align 6")
    A(f".amdhsa_kernel {main}")
    A("  .amdhsa_next_free_vgpr 256")
    A("  .amdhsa_next_free_sgpr 96")
    A("  .amdhsa_accum_offset 256")
    A("  .amdhsa_group_segment_fixed_size 0")
    A("  .amdhsa_kernarg_size 80")
    A("  .amdhsa_user_sgpr_count 2")
    A("  .amdhsa_user_sgpr_kernarg_segment_ptr 1")
    A("  .amdhsa_system_sgpr_workgroup_id_x 1")
    A("  .amdhsa_float_denorm_mode_32 3")
    A(".end_amdhsa_kernel")
    return "\n".join(L) + "\n"


if __name__ == "__main__":
    out = sys.argv[1] if len(sys.argv) > 1 else f"cdna_kernels/{BASE}.s"
    kw = {}
    for a in sys.argv[2:]:
        k, v = a.split("=")
        kw[k] = int(v) if v.lstrip("-").isdigit() else v
    open(out, "w").write(gen(**kw))
    print("wrote", out, kw)
```

```python
import sys

BASE = "standalone__kv_cache_quant_int4_int2_kv_with_per_channel_or_per_token_scales__decode"
HEADER = """; Kernarg layout for this problem (80 bytes, ptrs only, base s[0:1]):
"""

LOG2E = 0x3fb8aa3b
SCALE = 0x3db504f3


def gen(PS=7, PA=6, flags="nt", sflags="nt", ts=0, T1=8, T2=4, tk=2, vo=1):
    L = []
    A = L.append
    G = 8
    nwg, wpb = 256, 8
    CNT_OFF = 4 << 20
    TS_OFF = 5 << 20
    WS_BYTES = 6 << 20
    lgG = 3
    NA = G * PS
    NC = G * (16 - 2 * PS)
    D1 = NC - T1 - T2
    assert D1 >= 0 and 4 <= PA <= PS
    MAXA = NA - 7 * PA
    assert MAXA <= 30
    RS = max(2048, MAXA * 256)
    LB = 8 * RS
    assert 7 * RS + 1024 + 1024 < 65536
    TK_OFF = 128
    main = BASE + "_kernel"
    A(HEADER.rstrip())
    A(f"; @launch grid=({nwg},1,1) block=({wpb*64},1,1) lds={LB+256}")
    A('.amdgcn_target "amdgcn-amd-amdhsa--gfx950"')
    A(".text")

    vK, vV, vS = 1, 2, 3
    QB = 4
    KZ = 8
    KS = 16
    SR = 24
    ZR = 28
    VZ = 32
    T = 48
    U = 52
    AK = 60
    D = 64
    TT = 72
    BV = 60
    PA_ = 80
    ACC = 84
    MR, LS = 116, 117
    X0, X1, X2, X3 = 118, 119, 120, 121
    LGR = 122
    X4, X5, vLD = 122, 123, 124
    vAT, vTK = 126, 127
    KB = 128
    VB = 192

    def vz(j):
        return VZ + 2 * j
    def vs(j):
        return VZ + 2 * j + 1
    def stamp(lab):
        A("  s_memrealtime s[86:87]")
        A("  s_waitcnt lgkmcnt(0)")
        A("  s_sub_u32 s89, s86, s84")

    A(f".globl {main}")
    A(".p2align 8")
    A(f".type {main},@function")
    A(f"{main}:")
    A(f"  s_cmp_ge_u32 s2, {nwg}")
    A("  s_cbranch_scc1 L_main_end")
    if ts:
        A("  s_memrealtime s[84:85]")
    A("  s_load_dwordx8 s[4:11], s[0:1], 0")
    A("  s_load_dwordx4 s[12:15], s[0:1], 32")
    A("  s_load_dwordx2 s[16:17], s[0:1], 48    ; vz")
    A("  s_load_dwordx4 s[20:23], s[0:1], 64")
    A("  s_load_dwordx2 s[90:91], s[0:1], 56    ; out")
    A("  v_lshrrev_b32 v4, 6, v0")
    A("  v_and_b32 v0, 63, v0                    ; lane")
    A("  v_readfirstlane_b32 s3, v4")
    A(f"  s_lshr_b32 s24, s2, {lgG}                ; pool")
    A(f"  s_and_b32 s25, s2, {G-1}")
    A("  s_lshr_b32 s26, s2, 4")
    A(f"  s_and_b32 s27, s2, {15 & ~(G-1)}")
    A("  s_lshl_b32 s27, s27, 7")
    A("  s_add_u32 s27, s27, s3")
    A("  s_lshl_b32 s83, s2, 11")
    A("  s_lshl_b32 s18, s26, 25")
    A("  s_lshl_b32 s19, s26, 17")
    A("  v_lshrrev_b32 v4, 4, v0                 ; g")
    A("  v_bfe_u32 v5, v0, 2, 2                  ; a")
    A("  v_and_b32 v6, 3, v0                     ; r")
    A("  v_and_b32 v7, 15, v0                    ; n")
    A("  v_lshlrev_b32 v1, 12, v5")
    A("  v_lshl_add_u32 v1, v4, 6, v1")
    A("  v_lshl_add_u32 v1, v6, 4, v1            ; voffK")
    A("  v_lshlrev_b32 v2, 12, v4")
    A("  v_lshl_add_u32 v2, v7, 4, v2            ; voffV")
    A("  v_lshlrev_b32 v3, 4, v4                 ; voffS")
    A("  v_bfe_u32 v8, v0, 2, 1                  ; h")
    A("  v_lshlrev_b32 v9, 5, v4                 ; 32g")
    A("  v_lshl_add_u32 v9, v6, 3, v9            ; 32g + 8r")
    A("  s_lshl_b32 s28, s26, 9                  ; kvh*512")
    A("  v_lshl_add_u32 v10, v8, 8, v9")
    A("  v_add_u32 v10, s28, v10                 ; q offset")
    A("  s_lshr_b32 s28, s2, 3")
    A("  s_lshl_b32 s28, s28, 8")
    A("  v_add_u32 v11, s28, v9")
    A(f"  v_mov_b32 v{vAT}, 0")
    A(f"  v_mov_b32 v{vTK}, 0")

    def setitemA(su, dK, tmp):
        A(f"  s_lshr_b32 s{dK}, s{su}, {lgG}")
        A(f"  s_lshl_b32 s{dK}, s{dK}, 1")
        A(f"  s_add_u32 s{dK}, s{dK}, s26")
        A(f"  s_and_b32 s{dK}, s{dK}, 15")
        A(f"  s_lshl_b32 s{dK}, s{dK}, 3")
        A(f"  s_and_b32 s{tmp}, s{su}, {G-1}")
        A(f"  s_lshl_b32 s{tmp}, s{tmp}, 7")
        A(f"  s_add_u32 s{dK}, s{dK}, s{tmp}")
        A(f"  s_add_u32 s{dK}, s{dK}, s27")
        A(f"  s_lshl_b32 s{dK}, s{dK}, 14")
    def setitemC(su, dK, dS):
        A(f"  s_lshr_b32 s{dK}, s{su}, {lgG}")
        A(f"  s_add_u32 s{dK}, s{dK}, s26")
        A(f"  s_add_u32 s{dK}, s{dK}, {2*PS}")
        A(f"  s_and_b32 s{dK}, s{dK}, 15")
        A(f"  s_lshl_b32 s{dK}, s{dK}, 3")
        A(f"  s_and_b32 s{dS}, s{su}, {G-1}")
        A(f"  s_lshl_b32 s{dS}, s{dS}, 7")
        A(f"  s_add_u32 s{dK}, s{dK}, s{dS}")
        A(f"  s_add_u32 s{dK}, s{dK}, s27")
        A(f"  s_lshl_b32 s{dS}, s{dK}, 6")
        A(f"  s_lshl_b32 s{dK}, s{dK}, 14")
    def second(d, a, tmp):
        A(f"  s_add_u32 s{d}, s{a}, 0x20000")
        A(f"  s_and_b32 s{d}, s{d}, 0x1e0000")
        A(f"  s_andn2_b32 s{tmp}, s{a}, 0x1e0000")
        A(f"  s_or_b32 s{d}, s{d}, s{tmp}")
    setitemA(25, 72, 73)
    A("  s_cmp_eq_u32 s25, 0")
    A("  s_cselect_b32 s74, 1, 0")
    A("  s_cmp_eq_u32 s3, 0")
    A("  s_cselect_b32 s80, 1, 0                 ; wave 0")
    A("  s_and_b32 s81, s74, s80")
    A("  s_waitcnt lgkmcnt(0)")
    def srd(d, lo, hi, off, nrec):
        if off is None:
            A(f"  s_mov_b32 s{d}, s{lo}")
            A(f"  s_mov_b32 s{d+1}, s{hi}")
        else:
            A(f"  s_add_u32 s{d}, s{lo}, s{off}")
            A(f"  s_addc_u32 s{d+1}, s{hi}, 0")
        A(f"  s_mov_b32 s{d+2}, {nrec}")
        A(f"  s_mov_b32 s{d+3}, 0x00020000")
    sQ, sK, sV, sKS, sKZ, sVS, sVZ, sWS, sDB = ("s[32:35]", "s[36:39]", "s[40:43]", "s[44:47]", "s[48:51]", "s[52:55]", "s[56:59]", "s[60:63]", "s[76:79]")
    srd(32, 4, 5, None, 8192)
    srd(44, 10, 11, None, 8192)
    srd(48, 12, 13, None, 8192)
    srd(36, 6, 7, 18, 1 << 25)
    c0 = 48
    A(f"  buffer_load_dwordx2 v[{QB}:{QB+1}], v10, {sQ}, 0 offen")
    A(f"  buffer_load_dwordx2 v[{QB+2}:{QB+3}], v10, {sQ}, 0 offen offset:128")
    A(f"  buffer_load_dwordx2 v[{c0}:{c0+1}], v11, {sKZ}, 0 offen")
    A(f"  buffer_load_dwordx2 v[{c0+2}:{c0+3}], v11, {sKZ}, 0 offen offset:128")
    A(f"  buffer_load_dwordx2 v[{c0+4}:{c0+5}], v11, {sKS}, 0 offen")
    A(f"  buffer_load_dwordx2 v[{c0+6}:{c0+7}], v11, {sKS}, 0 offen offset:128")

    def kpair(dst, i, so):
        for u in range(2):
            r = dst + (2 * i + u) * 4
            A(f"  buffer_load_dwordx4 v[{r}:{r+3}], v{vK}, {sK}, s{so} offen offset:{i*512+u*256} {flags}")
    def vpair(dst, i, so):
        if vo:
            for u in range(2):
                r = dst + 8 * i + 4 * u
                A(f"  buffer_load_dwordx4 v[{r}:{r+3}], v{vV}, {sV}, s{so} offen offset:{(2*(i>>1)+u)*512+(i&1)*256} {flags}")
            return
        half = i // 4
        for j in (2 * (i % 4), 2 * (i % 4) + 1):
            r = dst + (half * 8 + j) * 4
            A(f"  buffer_load_dwordx4 v[{r}:{r+3}], v{vV}, {sV}, s{so} offen offset:{j*512+half*256} {flags}")
    def small(so):
        A(f"  v_bfe_u32 v{X0}, v0, 2, 1")
        A(f"  s_lshr_b32 s4, s{so}, 8")
        A(f"  v_lshl_add_u32 v{X0}, v{X0}, 6, v{vS}")
        A(f"  buffer_load_dwordx4 v[{SR}:{SR+3}], v{vS}, {sVS}, s4 offen {sflags}")
        A(f"  v_add_u32 v{X0}, s49, v{X0}")
        A(f"  buffer_load_dwordx4 v[{ZR}:{ZR+3}], v{vS}, {sVZ}, s4 offen {sflags}")
        A(f"  ds_read_b128 v[{LGR}:{LGR+3}], v{X0}")
        A("  s_add_u32 s49, s49, 128")
    for i in range(8):
        kpair(KB, i, 72)
    srd(40, 8, 9, 18, 1 << 25)
    srd(52, 14, 15, 19, 1 << 17)
    srd(56, 16, 17, 19, 1 << 17)
    srd(60, 22, 23, None, WS_BYTES)
    srd(76, 20, 21, None, 256)
    srd(92, 90, 91, None, 8192)
    A("  s_lshl_b32 s6, s24, 8")
    A(f"  s_add_u32 s6, s6, {CNT_OFF}")
    A("  s_add_u32 s9, s6, 4")
    A("  s_mov_b32 s7, s24")
    if tk >= 2:
        A("  s_mov_b32 s8, -1")
    elif tk:
        A(f"  s_mul_i32 s8, s25, {PA-1}")
        A("  s_lshr_b32 s8, s8, 3")
    else:
        A("  s_mov_b32 s8, 0")
    A("  s_cmp_eq_u32 s80, 0")
    A("  s_cbranch_scc1 L_noinit")
    A(f"  v_lshl_add_u32 v{X0}, v0, 3, s25")
    A(f"  v_lshlrev_b32 v{X1}, 2, v0")
    A(f"  s_mov_b64 exec, {(1 << PA) - 1}")
    A(f"  ds_write_b32 v{X1}, v{X0} offset:{LB}")
    A("  s_mov_b64 exec, -1")
    A("  s_cmp_eq_u32 s81, 0")
    A("  s_cbranch_scc1 L_noinit")
    A("  s_mov_b64 exec, 1")
    A(f"  buffer_store_dwordx2 v[{vAT}:{vTK}], off, {sWS}, s6 sc1   ; counters = 0")
    A("  s_mov_b64 exec, -1")
    A("L_noinit:")
    for i in range(32):
        A(f"  v_mov_b32 v{ACC+i}, 0")
    A(f"  v_mov_b32 v{MR}, 0xff800000")
    A(f"  v_mov_b32 v{LS}, 0")
    A("  s_mov_b32 s64, 0xffff0000")
    A("  s_mov_b32 s65, 0xffff0000")
    A(f"  s_mov_b32 s66, 0x{LOG2E:08x}")
    A(f"  s_mov_b32 s67, 0x{SCALE:08x}")
    A("  s_mov_b32 s68, 0xffff0000")
    A("  s_mov_b32 s28, s25                      ; item")
    A("  s_mov_b32 s29, 0")
    A(f"  s_mov_b32 s31, {LB+128}")
    A("  s_mov_b32 s89, 0")
    A("  s_mov_b32 s30, 1")
    A("  s_lshr_b32 s82, s3, 1")
    A("  s_lshl_b32 s82, 1, s82")
    second(32, 72, 73)
    A("  s_mov_b32 s33, 0")
    A("  s_mov_b32 s34, 0")
    A(f"  s_mul_i32 s48, s3, {RS}")
    A("  s_mov_b32 s49, s48")
    A("  s_mov_b32 s50, 0x00110011")
    A("  s_mov_b32 s51, 0x00110011")
    A("  s_waitcnt vmcnt(16)")
    for i in range(4):
        A(f"  v_lshlrev_b32 v{KZ+2*i}, 16, v{c0+i}")
        A(f"  v_and_b32 v{KZ+2*i+1}, s68, v{c0+i}")
        A(f"  v_and_b32 v{KS+2*i}, 0xffff, v{c0+4+i}")
        A(f"  v_and_b32 v{KS+2*i+1}, s68, v{c0+4+i}")

    def dppsum_parts(m):
        d = D + 4 * (m % 2)
        t = TT + m
        g0 = [f"  v_mov_b32_dpp v{X2}, v{d} quad_perm:[0,0,0,0] row_mask:0xf bank_mask:0xf",
              f"  v_mov_b32_dpp v{X3}, v{d+2} quad_perm:[2,2,2,2] row_mask:0xf bank_mask:0xf"]
        g1 = [f"  v_add_f32_dpp v{X2}, v{d+1}, v{X2} quad_perm:[1,1,1,1] row_mask:0xf bank_mask:0xf",
              f"  v_add_f32_dpp v{X3}, v{d+3}, v{X3} quad_perm:[3,3,3,3] row_mask:0xf bank_mask:0xf"]
        g2 = [f"  v_add_f32 v{t}, v{X2}, v{X3}"]
        return g0, g1, g2

    def kcore(src, dst, nxt_v, nxt_off, W):
        for m in range(8):
            x = src + m * 8
            A(f"  s_waitcnt vmcnt({W})")
            for i in range(8):
                A(f"  v_cvt_f32_i32 v{x+i}, v{x+i}")
            for i in range(4):
                A(f"  v_pk_add_f32 v[{x+2*i}:{x+2*i+1}], v[{x+2*i}:{x+2*i+1}], v[{KZ+2*i}:{KZ+2*i+1}] neg_lo:[0,1] neg_hi:[0,1]")
            for i in range(4):
                A(f"  v_cvt_pk_bf16_f32 v{T+i}, v{x+2*i}, v{x+2*i+1}")
            (vpair if nxt_v else kpair)(dst, m, nxt_off)
            g0, g1, g2 = dppsum_parts(m - 1) if m > 0 else ([], [], [])
            for x_ in g0: A(x_)
            for i in range(8):
                A(f"  v_dot2_f32_bf16 v{U+i}, v{T+i//2}, v{KS+i}, 0")
                if i == 1:
                    for x_ in g1: A(x_)
                if i == 3:
                    for x_ in g2: A(x_)
            for i in range(4):
                A(f"  v_cvt_pk_bf16_f32 v{AK+i}, v{U+2*i}, v{U+2*i+1}")
            A("  s_nop 1")
            d = D + 4 * (m % 2)
            A(f"  v_mfma_f32_16x16x32_bf16 v[{d}:{d+3}], v[{AK}:{AK+3}], v[{QB}:{QB+3}], 0")

    def kblock(src, nxt_v, nxt_off):
        dst = VB if src == KB else KB
        if nxt_v:
            small(nxt_off)
        kcore(src, dst, nxt_v, nxt_off, 16 if nxt_v else 14)
        A(f"  v_bfe_u32 v{X0}, v0, 2, 1")
        for i in range(3):
            A(f"  v_cvt_pk_bf16_f32 v{T+i}, v{TT+2*i}, v{TT+2*i+1}")
        A(f"  v_lshl_add_u32 v{X0}, v{X0}, 6, v{vS}")
        for i in range(3):
            A(f"  v_lshlrev_b32 v{TT+2*i}, 16, v{T+i}")
            A(f"  v_and_b32 v{TT+2*i+1}, s68, v{T+i}")
        g0, g1, g2 = dppsum_parts(7)
        for x_ in g0: A(x_)
        for i in range(2):
            A(f"  v_mul_f32 v{TT+i}, s67, v{TT+i}")
        for x_ in g1: A(x_)
        for i in range(2, 6):
            A(f"  v_mul_f32 v{TT+i}, s67, v{TT+i}")
        for x_ in g2: A(x_)
        A(f"  v_cvt_pk_bf16_f32 v{T+3}, v{TT+6}, v{TT+7}")
        for i in range(3):
            A(f"  v_cvt_pk_bf16_f32 v{T+i}, v{TT+2*i}, v{TT+2*i+1}")
        A(f"  v_lshlrev_b32 v{TT+6}, 16, v{T+3}")
        A(f"  v_and_b32 v{TT+7}, s68, v{T+3}")
        A(f"  v_add_u32 v{X0}, s48, v{X0}")
        A(f"  v_mul_f32 v{TT+6}, s67, v{TT+6}")
        A(f"  v_mul_f32 v{TT+7}, s67, v{TT+7}")
        A("  s_add_u32 s48, s48, 128")
        A(f"  v_cvt_pk_bf16_f32 v{T+3}, v{TT+6}, v{TT+7}")
        A("  s_mov_b64 exec, s[50:51]")
        A(f"  ds_write_b128 v{X0}, v[{T}:{T+3}]")
        A("  s_mov_b64 exec, -1")
        for i in range(4):
            A(f"  v_max3_f32 v{MR}, v{TT+2*i}, v{TT+2*i+1}, v{MR}")

    def probs():
        for i in range(8):
            A(f"  v_sub_f32 v{TT+i}, v{TT+i}, v{MR}")
        for i in range(8):
            A(f"  v_mul_f32 v{TT+i}, s66, v{TT+i}")
        for i in range(8):
            A(f"  v_exp_f32 v{TT+i}, v{TT+i}")
        A("  s_nop 0")
        for i in range(4):
            A(f"  v_cvt_pk_bf16_f32 v{PA_+i}, v{TT+2*i}, v{TT+2*i+1}")
        A(f"  v_add_f32 v{X0}, v{TT}, v{TT+1}")
        A(f"  v_add_f32 v{X1}, v{TT+2}, v{TT+3}")
        A(f"  v_add_f32 v{X2}, v{TT+4}, v{TT+5}")
        A(f"  v_add_f32 v{X3}, v{TT+6}, v{TT+7}")
        A(f"  v_add_f32 v{X0}, v{X0}, v{X1}")
        A(f"  v_add_f32 v{X2}, v{X2}, v{X3}")
        A(f"  v_add_f32 v{X0}, v{X0}, v{X2}")
        A(f"  v_add_f32 v{LS}, v{LS}, v{X0}")
    def unpack_sz():
        for i in range(4):
            A(f"  v_lshlrev_b32 v{vz(2*i)}, 16, v{ZR+i}")
            A(f"  v_and_b32 v{vz(2*i+1)}, s68, v{ZR+i}")
            A(f"  v_and_b32 v{vs(2*i)}, 0xffff, v{SR+i}")
            A(f"  v_and_b32 v{vs(2*i+1)}, s68, v{SR+i}")
    def prelude(nxt_off):
        A("  s_waitcnt vmcnt(16) lgkmcnt(0)")
        unpack_sz()
        for i in range(4):
            A(f"  v_lshlrev_b32 v{TT+2*i}, 16, v{LGR+i}")
            A(f"  v_and_b32 v{TT+2*i+1}, s68, v{LGR+i}")
        if nxt_off is not None:
            small(nxt_off)
        probs()
    def vcore(src, nxt_v, nxt_off, W):
        dst = VB if src == KB else KB
        for m in range(8 if vo else 0):
            jp, half = m >> 1, m & 1
            j = 2 * jp
            x = src + 8 * m
            y = x + 4
            bv = src if half else BV
            A(f"  s_waitcnt vmcnt({W})")
            for i in range(8):
                A(f"  v_cvt_f32_i32 v{x+i}, v{x+i}")
            for (b, z) in ((x, vz(j)), (y, vz(j + 1))):
                for i in range(2):
                    A(f"  v_pk_add_f32 v[{b+2*i}:{b+2*i+1}], v[{b+2*i}:{b+2*i+1}], v[{z}:{z+1}] op_sel_hi:[1,0] neg_lo:[0,1] neg_hi:[0,1]")
            for c in range(4):
                A(f"  v_cvt_pk_bf16_f32 v{T+c}, v{x+c}, v{y+c}")
            (vpair if nxt_v else kpair)(dst, m, nxt_off)
            for c in range(4):
                A(f"  v_dot2_f32_bf16 v{U+2*c}, v{T+c}, v{vs(j)}, 0")
                A(f"  v_dot2_f32_bf16 v{U+2*c+1}, v{T+c}, v{vs(j+1)}, 0")
            for c in range(4):
                A(f"  v_cvt_pk_bf16_f32 v{bv+4*c+jp}, v{U+2*c}, v{U+2*c+1}")
            if m >= 6:
                A("  s_nop 1")
                for c in range(4):
                    a = ACC + (half * 4 + c) * 4
                    A(f"  v_mfma_f32_16x16x32_bf16 v[{a}:{a+3}], v[{PA_}:{PA_+3}], v[{bv+4*c}:{bv+4*c+3}], v[{a}:{a+3}]")
        for half in range(0 if vo else 2):
            for jp in range(4):
                j = 2 * jp
                x = src + (half * 8 + j) * 4
                y = x + 4
                m = half * 4 + jp
                A(f"  s_waitcnt vmcnt({W})")
                for i in range(8):
                    A(f"  v_cvt_f32_i32 v{x+i}, v{x+i}")
                for (b, z) in ((x, vz(j)), (y, vz(j + 1))):
                    for i in range(2):
                        A(f"  v_pk_add_f32 v[{b+2*i}:{b+2*i+1}], v[{b+2*i}:{b+2*i+1}], v[{z}:{z+1}] op_sel_hi:[1,0] neg_lo:[0,1] neg_hi:[0,1]")
                for c in range(4):
                    A(f"  v_cvt_pk_bf16_f32 v{T+c}, v{x+c}, v{y+c}")
                (vpair if nxt_v else kpair)(dst, m, nxt_off)
                for c in range(4):
                    A(f"  v_dot2_f32_bf16 v{U+2*c}, v{T+c}, v{vs(j)}, 0")
                    A(f"  v_dot2_f32_bf16 v{U+2*c+1}, v{T+c}, v{vs(j+1)}, 0")
                for c in range(4):
                    A(f"  v_cvt_pk_bf16_f32 v{BV+4*c+jp}, v{U+2*c}, v{U+2*c+1}")
            A("  s_nop 1")
            for c in range(4):
                a = ACC + (half * 4 + c) * 4
                A(f"  v_mfma_f32_16x16x32_bf16 v[{a}:{a+3}], v[{PA_}:{PA_+3}], v[{BV+4*c}:{BV+4*c+3}], v[{a}:{a+3}]")

    A(".p2align 6")
    A("L_A:")
    kblock(KB, False, 32)
    A(f"  s_cmp_lt_u32 s29, {PA-1}")
    A("  s_cbranch_scc0 L_Adyn")
    A(f"  s_add_u32 s28, s28, {G}")
    A("  s_barrier")
    A("  s_cmp_eq_u32 s80, 0")
    A("  s_cbranch_scc1 L_Anext")
    A("  s_cmp_eq_u32 s29, 0")
    A("  s_cbranch_scc0 L_As2")
    for i in range(4):
        A(f"  v_mov_b32 v{X0+i}, -1")
    A(f"  v_lshlrev_b32 v{X4}, 4, v0")
    A(f"  v_lshrrev_b32 v{X5}, 1, v0")
    A(f"  buffer_store_dwordx4 v[{X0}:{X0+3}], v{X4}, {sWS}, s83 offen sc1")
    A("  s_mov_b64 exec, 0x10001")
    A(f"  buffer_store_dwordx2 v[{X0}:{X0+1}], v{X5}, {sWS}, s83 offen offset:1024 sc1")
    A("  s_mov_b64 exec, -1")
    A("  s_cmp_eq_u32 s81, 0")
    A("  s_cbranch_scc1 L_Anext")
    A(f"  v_mov_b32 v{vAT}, 1")
    A("  s_mov_b64 exec, 1")
    A(f"  buffer_store_byte v{vAT}, off, {sDB}, s7 sc1")
    A("  s_mov_b64 exec, -1")
    A("  s_branch L_Anext")
    A("L_As2:")
    if tk == 2:
        A("  s_cmp_eq_u32 s29, 1")
        A("  s_cbranch_scc0 L_As2b")
        A("  s_lshl_b32 s71, s26, 2")
        A(f"  s_add_u32 s71, s71, {TK_OFF}")
        A(f"  v_mov_b32 v{vTK}, 1")
        A("  s_mov_b64 exec, 1")
        A(f"  buffer_atomic_add v{vTK}, off, {sDB}, s71 sc0 sc1   ; ticket")
        A("  s_mov_b64 exec, -1")
        A("L_As2b:")
    if tk == 3:
        A("  s_and_b32 s71, s2, 15")
        A(f"  v_mov_b32 v{vTK}, s71")
    A(f"  s_cmp_eq_u32 s29, {PA-3}")
    A("  s_cbranch_scc0 L_As3")
    A("  s_mov_b64 exec, 1")
    A(f"  buffer_load_ubyte v{vAT}, off, {sDB}, s7 sc1")
    A("  s_mov_b64 exec, -1")
    A("  s_branch L_Anext")
    A("L_As3:")
    A(f"  s_cmp_eq_u32 s29, {PA-2}")
    A("  s_cbranch_scc0 L_Anext")
    A(f"  v_readfirstlane_b32 s70, v{vAT}")
    A("  s_or_b32 s74, s74, s70")
    A("  s_branch L_Aclaim")
    A("L_Adyn:")
    A("  s_lshl_b32 s71, s29, 2")
    A(f"  v_mov_b32 v{X1}, s71")
    A("  s_cmp_eq_u32 s80, 0")
    A("  s_cbranch_scc1 L_Async")
    A(f"  v_readfirstlane_b32 s70, v{vAT}")
    A(f"  s_add_u32 s70, s70, {PA*G}")
    A(f"  s_min_u32 s70, s70, {NA}")
    A("  s_cmp_eq_u32 s74, 0")
    A(f"  s_cselect_b32 s70, {NA}, s70")
    A(f"  v_mov_b32 v{X0}, s70")
    A(f"  ds_write_b32 v{X1}, v{X0} offset:{LB+4}")
    A("  s_waitcnt lgkmcnt(0)")
    A("L_Async:")
    A("  s_barrier")
    A(f"  ds_read_b32 v{X1}, v{X1} offset:{LB+4}")
    A("  s_waitcnt lgkmcnt(0)")
    A(f"  v_readfirstlane_b32 s28, v{X1}")
    A(f"  s_cmp_lt_u32 s28, {NA}")
    A("  s_cbranch_scc0 L_Alast")
    A("  s_cmp_eq_u32 s80, 0")
    A("  s_cbranch_scc1 L_Anext")
    A("L_Aclaim:")
    A("  s_cmp_eq_u32 s74, 0")
    A("  s_cbranch_scc1 L_Anext")
    A(f"  v_mov_b32 v{vAT}, 1")
    A("  s_mov_b64 exec, 1")
    A(f"  buffer_atomic_add v{vAT}, off, {sWS}, s6 sc0 sc1")
    A("  s_mov_b64 exec, -1")
    A("L_Anext:")
    setitemA(28, 70, 71)
    kblock(VB, False, 70)
    A("  s_mov_b32 s72, s70")
    second(32, 72, 73)
    A("  s_add_u32 s29, s29, 1")
    A("  s_branch L_A")
    A("L_Alast:")
    if ts == 1:
        stamp("a")
    setitemA(25, 70, 71)
    kblock(VB, True, 70)
    A("  s_mov_b32 s72, s70")
    second(32, 72, 73)
    A("  s_add_u32 s33, s29, 1")
    A("  s_mov_b32 s29, 0")
    A(f"  v_cvt_pk_bf16_f32 v{X0}, v{MR}, v{MR}")
    A(f"  v_and_b32 v{X0}, s68, v{X0}")
    A(f"  v_mov_b32 v{X1}, v{X0}")
    A("  s_nop 1")
    A(f"  v_permlane16_swap_b32 v{X0}, v{X1}")
    A(f"  v_max_f32 v{X0}, v{X0}, v{X1}")
    A(f"  v_mov_b32 v{X1}, v{X0}")
    A("  s_nop 1")
    A(f"  v_permlane32_swap_b32 v{X0}, v{X1}")
    A(f"  v_max_f32 v{MR}, v{X0}, v{X1}")

    A(".p2align 6")
    A("L_B:")
    prelude(32)
    vcore(KB, True, 32, 16)
    prelude(None)
    A("  s_add_u32 s70, s29, 1")
    A("  s_cmp_lt_u32 s70, s33")
    A("  s_cbranch_scc0 L_dyn")
    A("  s_lshl_b32 s71, s29, 2")
    A(f"  v_mov_b32 v{X1}, s71")
    A(f"  ds_read_b32 v{X1}, v{X1} offset:{LB+4}")
    A("  s_barrier")
    A("  s_cmp_eq_u32 s80, 0")
    A("  s_cbranch_scc1 L_Bnext")
    A("  s_cmp_eq_u32 s29, s8")
    A("  s_cbranch_scc0 L_Bs2")
    A("  s_lshl_b32 s71, s26, 2")
    A(f"  s_add_u32 s71, s71, {TK_OFF}")
    A(f"  v_mov_b32 v{vTK}, 1")
    A("  s_mov_b64 exec, 1")
    A(f"  buffer_atomic_add v{vTK}, off, {sDB}, s71 sc0 sc1   ; ticket")
    A("  s_mov_b64 exec, -1")
    A("L_Bs2:")
    A("  s_add_u32 s70, s29, 2")
    A("  s_cmp_eq_u32 s70, s33")
    A("  s_cbranch_scc0 L_Bnext")
    A("  s_cmp_eq_u32 s74, 0")
    A("  s_cbranch_scc1 L_Bnext")
    A(f"  v_mov_b32 v{vAT}, 1")
    A("  s_mov_b64 exec, 1")
    A(f"  buffer_atomic_add v{vAT}, off, {sWS}, s9 sc0 sc1")
    A("  s_mov_b64 exec, -1")
    A("L_Bnext:")
    A("  s_waitcnt lgkmcnt(0)")
    A(f"  v_readfirstlane_b32 s28, v{X1}")
    setitemA(28, 70, 71)
    small(70)
    vcore(VB, True, 70, 16)
    A("  s_mov_b32 s72, s70")
    second(32, 72, 73)
    A("  s_add_u32 s29, s29, 1")
    A("  s_branch L_B")

    A(".p2align 6")
    A("L_loop:")
    A("  s_cmp_eq_u32 s30, 0")
    A("  s_cbranch_scc1 L_idle")
    A(f"  buffer_load_dwordx4 v[{SR}:{SR+3}], v{vS}, {sVS}, s73 offen {sflags}")
    A(f"  buffer_load_dwordx4 v[{ZR}:{ZR+3}], v{vS}, {sVZ}, s73 offen {sflags}")
    kcore(KB, VB, True, 72, 16)
    A("  s_waitcnt vmcnt(16)")
    unpack_sz()
    g0, g1, g2 = dppsum_parts(7)
    for x_ in g0: A(x_)
    A("  s_nop 1")
    for x_ in g1: A(x_)
    for x_ in g2: A(x_)
    for i in range(4):
        A(f"  v_cvt_pk_bf16_f32 v{T+i}, v{TT+2*i}, v{TT+2*i+1}")
    for i in range(4):
        A(f"  v_lshlrev_b32 v{TT+2*i}, 16, v{T+i}")
        A(f"  v_and_b32 v{TT+2*i+1}, s68, v{T+i}")
    for i in range(8):
        A(f"  v_mul_f32 v{TT+i}, s67, v{TT+i}")
    for i in range(4):
        A(f"  v_cvt_pk_bf16_f32 v{T+i}, v{TT+2*i}, v{TT+2*i+1}")
    for i in range(4):
        A(f"  v_lshlrev_b32 v{TT+2*i}, 16, v{T+i}")
        A(f"  v_and_b32 v{TT+2*i+1}, s68, v{T+i}")
    A(f"  v_max3_f32 v{X0}, v{TT}, v{TT+1}, v{TT+2}")
    A(f"  v_max3_f32 v{X1}, v{TT+3}, v{TT+4}, v{TT+5}")
    A(f"  v_max3_f32 v{X0}, v{TT+6}, v{TT+7}, v{X0}")
    A(f"  v_max_f32 v{X0}, v{X0}, v{X1}")
    A(f"  v_mov_b32 v{X1}, v{X0}")
    A("  s_nop 1")
    A(f"  v_permlane16_swap_b32 v{X0}, v{X1}")
    A(f"  v_max_f32 v{X0}, v{X0}, v{X1}")
    A(f"  v_mov_b32 v{X1}, v{X0}")
    A("  s_nop 1")
    A(f"  v_permlane32_swap_b32 v{X0}, v{X1}")
    A(f"  v_max_f32 v{X0}, v{X0}, v{X1}")
    A(f"  v_cmp_gt_f32 vcc, v{X0}, v{MR}")
    A("  s_cbranch_vccz L_norescale")
    A(f"  v_max_f32 v{X0}, v{X0}, v{MR}")
    A(f"  v_sub_f32 v{X1}, v{MR}, v{X0}")
    A(f"  v_mul_f32 v{X1}, s66, v{X1}")
    A(f"  v_exp_f32 v{X1}, v{X1}")
    A(f"  v_mov_b32 v{MR}, v{X0}")
    A("  s_nop 0")
    A(f"  v_mul_f32 v{LS}, v{LS}, v{X1}")
    A(f"  v_readlane_b32 s70, v{X1}, 0")
    A(f"  v_readlane_b32 s71, v{X1}, 4")
    A("  s_nop 1")
    A(f"  v_mov_b32 v{X2}, s70")
    A(f"  v_mov_b32 v{X3}, s71")
    A(f"  v_cndmask_b32 v{X2}, v{X2}, v{X3}, s[64:65]")
    for i in range(32):
        A(f"  v_mul_f32 v{ACC+i}, v{ACC+i}, v{X2}")
    A("L_norescale:")
    probs()
    A("L_dyn:")
    if ts == 2:
        A("  s_cmp_lg_u32 s89, 0")
        A("  s_cbranch_scc1 L_tsd")
        stamp("b")
        A("L_tsd:")
    A("  s_cmp_eq_u32 s80, 0")
    A("  s_cbranch_scc1 L_sync")
    A(f"  v_readfirstlane_b32 s70, v{vAT}")
    A("  s_lshl_b32 s71, s70, 4")
    A("  s_or_b32 s71, s71, 15")
    A(f"  s_cmp_lt_u32 s70, {D1}")
    A("  s_cbranch_scc1 L_enc")
    A(f"  s_sub_u32 s70, s70, {D1}")
    A("  s_lshr_b32 s71, s70, 1")
    A(f"  s_add_u32 s71, s71, {D1}")
    A("  s_lshl_b32 s71, s71, 4")
    A("  s_and_b32 s75, s70, 1")
    A("  s_lshl_b32 s75, s75, 1")
    A("  s_lshl_b32 s75, 3, s75")
    A("  s_or_b32 s71, s71, s75")
    A(f"  s_cmp_lt_u32 s70, {2*T1}")
    A("  s_cbranch_scc1 L_enc")
    A(f"  s_sub_u32 s70, s70, {2*T1}")
    A(f"  s_min_u32 s70, s70, {4*T2}")
    A("  s_lshr_b32 s71, s70, 2")
    A(f"  s_add_u32 s71, s71, {D1+T1}")
    A("  s_lshl_b32 s71, s71, 4")
    A("  s_and_b32 s75, s70, 3")
    A("  s_lshl_b32 s75, 1, s75")
    A("  s_or_b32 s71, s71, s75")
    A("L_enc:")
    A("  s_cmp_eq_u32 s74, 0")
    A(f"  s_cselect_b32 s70, {NC << 4}, s71")
    A(f"  v_mov_b32 v{X0}, s70")
    A(f"  v_mov_b32 v{X1}, s31")
    A(f"  ds_write_b32 v{X1}, v{X0}")
    A("  s_waitcnt lgkmcnt(0)")
    A("L_sync:")
    A("  s_barrier")
    A(f"  v_mov_b32 v{X1}, s31")
    A(f"  ds_read_b32 v{X1}, v{X1}")
    A("  s_xor_b32 s31, s31, 4")
    A("  s_waitcnt lgkmcnt(0)")
    A(f"  v_readfirstlane_b32 s28, v{X1}")
    A("  s_and_b32 s75, s28, s82")
    A("  s_lshr_b32 s28, s28, 4")
    A(f"  s_cmp_lt_u32 s28, {NC}")
    A("  s_cbranch_scc1 L_more")
    A("  s_mov_b32 s75, 0")
    A("  s_branch L_next")
    A("L_more:")
    A("  s_cmp_eq_u32 s80, 0")
    A("  s_cbranch_scc1 L_next")
    A(f"  v_mov_b32 v{vAT}, 1")
    A("  s_mov_b64 exec, 1")
    A(f"  buffer_atomic_add v{vAT}, off, {sWS}, s9 sc0 sc1")
    A("  s_mov_b64 exec, -1")
    A("L_next:")
    setitemC(28, 70, 71)
    A("  s_cmp_eq_u32 s75, 0")
    A(f"  s_cselect_b32 s38, 0, {1 << 25}")
    A("  s_cselect_b32 s70, 0, s70")
    A("  s_cmp_eq_u32 s30, 0")
    A("  s_cbranch_scc1 L_konly")
    vcore(VB, False, 70, 14)
    A("L_step:")
    A("  s_mov_b32 s72, s70")
    A("  s_mov_b32 s73, s71")
    A("  s_mov_b32 s30, s75")
    A("  s_add_u32 s34, s34, 1")
    A(f"  s_cmp_lt_u32 s28, {NC}")
    A("  s_cbranch_scc1 L_loop")
    A("  s_branch L_epi")
    A("L_idle:")
    A("  s_waitcnt vmcnt(0)")
    A("  s_branch L_dyn")
    A("L_konly:")
    A("  s_cmp_eq_u32 s75, 0")
    A("  s_cbranch_scc1 L_step")
    for m in range(8):
        kpair(KB, m, 70)
    A("  s_branch L_step")
    A("L_epi:")

    EO, EM, EL = 52, 56, 57
    A(f"  v_mov_b32 v{X1}, v{LS}")
    A("  s_nop 1")
    A(f"  v_permlane16_swap_b32 v{LS}, v{X1}")
    A(f"  v_add_f32 v{LS}, v{LS}, v{X1}")
    A(f"  v_mov_b32 v{X1}, v{LS}")
    A("  s_nop 1")
    A(f"  v_permlane32_swap_b32 v{LS}, v{X1}")
    A(f"  v_add_f32 v{LS}, v{LS}, v{X1}")
    A(f"  v_readfirstlane_b32 s49, v{vTK}")
    A(f"  v_readlane_b32 s70, v{MR}, 0")
    A(f"  v_readlane_b32 s71, v{MR}, 4")
    A(f"  v_readlane_b32 s72, v{LS}, 0")
    A(f"  v_readlane_b32 s73, v{LS}, 4")
    A(f"  v_lshlrev_b32 v{X4}, 4, v0               ; lane*16")
    A(f"  v_lshrrev_b32 v{X5}, 1, v0")
    A(f"  v_and_b32 v{X5}, 8, v{X5}")
    A("  s_cmp_eq_u32 s49, 15")
    A("  s_cselect_b32 s69, s80, 0")
    for j in range(1, 16):
        A(f"  s_xor_b32 s{3+j}, s83, {j << 11}")
    def poll():
        for j in range(1, 16):
            r = KB + 8 * (j - 1)
            A(f"  buffer_load_dwordx4 v[{r}:{r+3}], v{X4}, {sWS}, s{3+j} offen sc1")
            A(f"  buffer_load_dwordx2 v[{r+4}:{r+5}], v{X5}, {sWS}, s{3+j} offen offset:1024 sc1")
    A("  s_cmp_eq_u32 s69, 0")
    A("  s_cbranch_scc1 L_nopoll")
    A("  s_waitcnt vmcnt(0)")
    poll()
    A("L_nopoll:")
    A(f"  v_mov_b32 v{X0}, s70")
    A(f"  v_mov_b32 v{X1}, s71")
    A(f"  v_mov_b32 v{X2}, s72")
    A(f"  v_mov_b32 v{X3}, s73")
    A(f"  v_cndmask_b32 v{EM}, v{X0}, v{X1}, s[64:65]")
    A(f"  v_cndmask_b32 v{EL}, v{X2}, v{X3}, s[64:65]")
    A("  s_mov_b32 s74, 0")
    A("  s_mov_b32 s75, -1                       ; lanes 32..63")
    A(f"  s_mul_i32 s70, s3, {RS}")
    A(f"  v_add_u32 v{vLD}, s70, v{X4}")
    A(f"  v_lshl_add_u32 v{X0}, v0, 3, s70")
    A("  s_nop 4")
    for c in range(4):
        A(f"  v_cndmask_b32 v{EO+c}, v{ACC+c*4}, v{ACC+16+c*4}, s[74:75]")
    A(f"  ds_write_b128 v{vLD}, v[{EO}:{EO+3}]")
    A(f"  ds_write_b64 v{X0}, v[{EM}:{EL}] offset:1024")
    if ts:
        A("  s_memrealtime s[86:87]")
        A("  s_getreg_b32 s88, hwreg(HW_REG_XCC_ID)")
        A(f"  s_lshl_b32 s70, s2, 3")
        A("  s_add_u32 s70, s70, s3")
        A("  s_lshl_b32 s70, s70, 4")
        A(f"  s_add_u32 s70, s70, {TS_OFF}")
        A("  s_lshl_b32 s89, s89, 8")
        A("  s_or_b32 s88, s88, s89")
        A("  s_lshl_b32 s82, s33, 1")
        A("  s_add_u32 s82, s82, s34")
        A("  s_sub_u32 s82, s82, 2")
        A("  s_waitcnt lgkmcnt(0)")
        A("  v_mov_b32 v8, s84"); A("  v_mov_b32 v9, s86"); A("  v_mov_b32 v10, s88"); A("  v_mov_b32 v11, s82")
        A("  v_mov_b32 v12, s70")
        A("  s_mov_b64 exec, 1")
        A(f"  buffer_store_dwordx4 v[8:11], v12, {sWS}, 0 offen")
        A("  s_mov_b64 exec, -1")
    A("  s_waitcnt lgkmcnt(0)")
    A("  s_barrier")
    A("  s_cmp_eq_u32 s80, 0")
    A("  s_cbranch_scc1 L_main_end")
    RO, RM = ACC, VZ
    for w in range(1, 8):
        A(f"  ds_read_b128 v[{RO+4*w}:{RO+4*w+3}], v{vLD} offset:{RS*w}")
        A(f"  ds_read_b64 v[{RM+2*w}:{RM+2*w+1}], v{X0} offset:{RS*w+1024}")
    A("  s_waitcnt lgkmcnt(0)")

    def merge(items):
        ms = [m for _, m, _ in items]
        A(f"  v_max3_f32 v{X0}, v{EM}, v{ms[0]}, v{ms[1]}")
        k = 2
        while k < len(ms):
            if k + 1 < len(ms):
                A(f"  v_max3_f32 v{X0}, v{X0}, v{ms[k]}, v{ms[k+1]}"); k += 2
            else:
                A(f"  v_max_f32 v{X0}, v{X0}, v{ms[k]}"); k += 1
        for m in [EM] + ms:
            A(f"  v_sub_f32 v{m}, v{m}, v{X0}")
        for m in [EM] + ms:
            A(f"  v_mul_f32 v{m}, s66, v{m}")
        for m in [EM] + ms:
            A(f"  v_exp_f32 v{m}, v{m}")
        A("  s_nop 0")
        for c in range(4):
            A(f"  v_mul_f32 v{EO+c}, v{EO+c}, v{EM}")
        A(f"  v_mul_f32 v{EL}, v{EL}, v{EM}")
        for o, m, l in items:
            for c in range(4):
                A(f"  v_fmac_f32 v{EO+c}, v{o+c}, v{m}")
            A(f"  v_fmac_f32 v{EL}, v{l}, v{m}")
        A(f"  v_mov_b32 v{EM}, v{X0}")
    merge([(RO + 4 * w, RM + 2 * w, RM + 2 * w + 1) for w in range(1, 8)])
    A("  s_cmp_eq_u32 s69, 0")
    A("  s_cbranch_scc0 L_comb")
    for r in range(EO, EL + 1):
        A(f"  v_min_u32 v{r}, -2, v{r}")
    A(f"  buffer_store_dwordx4 v[{EO}:{EO+3}], v{X4}, {sWS}, s83 offen sc1")
    A("  s_mov_b64 exec, 0x10001")
    A(f"  buffer_store_dwordx2 v[{EM}:{EL}], v{X5}, {sWS}, s83 offen offset:1024 sc1")
    A("  s_endpgm")
    A("L_repoll:")
    A("  s_add_u32 s69, s69, 1")
    A("  s_cmp_gt_u32 s69, 0x100000")
    A("  s_cbranch_scc1 L_main_end")
    poll()
    A("L_comb:")
    A("  s_waitcnt vmcnt(0)")
    regs = [KB + 8 * (j - 1) + i for j in range(1, 16) for i in range(6)]
    A(f"  v_max3_u32 v{X0}, v{regs[0]}, v{regs[1]}, v{regs[2]}")
    A(f"  v_max3_u32 v{X1}, v{regs[3]}, v{regs[4]}, v{regs[5]}")
    k = 6
    while k < len(regs):
        A(f"  v_max3_u32 v{X0}, v{X0}, v{regs[k]}, v{regs[k+1]}")
        A(f"  v_max3_u32 v{X1}, v{X1}, v{regs[k+2]}, v{regs[k+3]}")
        k += 4
    A(f"  v_max_u32 v{X0}, v{X0}, v{X1}")
    A(f"  v_cmp_eq_u32 vcc, -1, v{X0}")
    A("  s_cbranch_vccnz L_repoll")
    merge([(KB + 8 * (j - 1), KB + 8 * (j - 1) + 4, KB + 8 * (j - 1) + 5) for j in range(1, 16)])
    A(f"  v_rcp_f32 v{X1}, v{EL}")
    A(f"  v_bfe_u32 v{X2}, v0, 4, 1                ; head")
    A(f"  v_lshrrev_b32 v{X3}, 5, v0               ; half")
    A(f"  v_and_b32 v{X4}, 15, v0")
    A(f"  v_fma_f32 v{X0}, -v{EL}, v{X1}, 1.0")
    A(f"  v_fma_f32 v{X1}, v{X0}, v{X1}, v{X1}")
    A(f"  v_lshlrev_b32 v{X2}, 8, v{X2}")
    A(f"  v_lshl_add_u32 v{X2}, v{X3}, 7, v{X2}")
    A(f"  v_lshl_add_u32 v{X2}, v{X4}, 3, v{X2}")
    for c in range(4):
        A(f"  v_mul_f32 v{EO+c}, v{EO+c}, v{X1}")
    A(f"  v_cvt_pk_bf16_f32 v{EO}, v{EO}, v{EO+1}")
    A(f"  v_cvt_pk_bf16_f32 v{EO+1}, v{EO+2}, v{EO+3}")
    A("  s_lshl_b32 s70, s26, 9")
    A(f"  buffer_store_dwordx2 v[{EO}:{EO+1}], v{X2}, s[92:95], s70 offen")
    if ts:
        A("  s_memrealtime s[86:87]")
        A("  s_lshl_b32 s70, s26, 3")
        A(f"  s_add_u32 s70, s70, {TS_OFF + 2048*16}")
        A("  s_waitcnt lgkmcnt(0)")
        A("  v_mov_b32 v8, s86"); A("  v_mov_b32 v9, s69")
        A("  v_mov_b32 v12, s70")
        A("  s_mov_b64 exec, 1")
        A(f"  buffer_store_dwordx2 v[8:9], v12, {sWS}, 0 offen")
    A("L_main_end:")
    A("  s_endpgm")

    A('.section .rodata,"a"')
    A(".p2align 6")
    A(f".amdhsa_kernel {main}")
    A("  .amdhsa_next_free_vgpr 256")
    A("  .amdhsa_next_free_sgpr 96")
    A("  .amdhsa_accum_offset 256")
    A("  .amdhsa_group_segment_fixed_size 0")
    A("  .amdhsa_kernarg_size 80")
    A("  .amdhsa_user_sgpr_count 2")
    A("  .amdhsa_user_sgpr_kernarg_segment_ptr 1")
    A("  .amdhsa_system_sgpr_workgroup_id_x 1")
    A("  .amdhsa_float_denorm_mode_32 3")
    A(".end_amdhsa_kernel")
    return "\n".join(L) + "\n"


if __name__ == "__main__":
    out = sys.argv[1] if len(sys.argv) > 1 else f"cdna_kernels/{BASE}.s"
    kw = {}
    for a in sys.argv[2:]:
        k, v = a.split("=")
        kw[k] = int(v) if v.lstrip("-").isdigit() else v
    open(out, "w").write(gen(**kw))
    print("wrote", out, kw)
```
